```python
import torch

def _softmax(x, axis=-1):
    return torch.softmax(x, dim=axis)
def _gelu(x):
    return torch.nn.functional.gelu(x, approximate="tanh")
def _silu(x):
    return torch.nn.functional.silu(x)
def _sigmoid(x):
    return torch.sigmoid(x)
def _layernorm(x, axis=-1, eps=1e-5):
    m = x.mean(dim=axis, keepdim=True)
    v = x.var(dim=axis, keepdim=True, unbiased=False)
    return (x - m) / torch.sqrt(v + eps)
def _scatter_add(tgt, idx, src, axis=0):
    return tgt.clone().index_add_(axis, idx, src)
def _segment_sum(src, seg, n):
    out = torch.zeros((n,) + src.shape[1:], dtype=src.dtype)
    return out.index_add_(0, seg, src)
def _pad(x, pw):
    flat = tuple(v for pair in reversed(pw) for v in pair)
    return torch.nn.functional.pad(x, flat)

kernel_name = 'parallel_sum__mha_block_cached__glu_gated_reglu__decode'

def setup_inputs():

    _w = (lambda a: (lambda t: t.to(torch.bfloat16) if t.is_floating_point() else t)(torch.as_tensor(a)))
    def _A_setup():
        B, Sq, D = 1, 1, 640
        H, Sk, Dh = 32, 32768, 192
        return {
            "x": _w((lambda *s: torch.randn(*s, dtype=torch.bfloat16) * 0.05)(B, Sq, D)),
            "k_cache": _w((lambda *s: torch.randn(*s, dtype=torch.bfloat16) * 3.2)(B, H, Sk, Dh)),
            "v_cache": _w((lambda *s: torch.randn(*s, dtype=torch.bfloat16) * 1.6)(B, H, Sk, Dh)),
            "wq": _w((lambda *s: torch.randn(*s, dtype=torch.bfloat16) * 3.2)(D, H * Dh) * (D ** -0.5)),
            "wo": _w((lambda *s: torch.randn(*s, dtype=torch.bfloat16) * 1.6)(H * Dh, D) * ((H * Dh) ** -0.5)),
        }
    _A_in = _A_setup()

    def _B_setup():
        B, S, D, F = 1, 1, 640, 1536
        return {
            "x": _w((lambda *s: torch.randn(*s, dtype=torch.bfloat16) * 0.05)(B, S, D)),
            "W_gate": _w((lambda *s: torch.randn(*s, dtype=torch.bfloat16) * 1.6)(D, F) * (2.0 / D) ** 0.5),
            "W_up": _w((lambda *s: torch.randn(*s, dtype=torch.bfloat16) * 1.6)(D, F) * (2.0 / D) ** 0.5),
            "W_down": _w((lambda *s: torch.randn(*s, dtype=torch.bfloat16) * 1.6)(F, D) * (1.0 / F) ** 0.5),
        }
    _B_in = _B_setup()

    return {
        "A_x": _A_in["x"],
        "A_k_cache": _A_in["k_cache"],
        "A_v_cache": _A_in["v_cache"],
        "A_wq": _A_in["wq"],
        "A_wo": _A_in["wo"],
        "B_x": _B_in["x"],
        "B_W_gate": _B_in["W_gate"],
        "B_W_up": _B_in["W_up"],
        "B_W_down": _B_in["W_down"],
    }

def reference(A_x, A_k_cache, A_v_cache, A_wq, A_wo, B_x, B_W_gate, B_W_up, B_W_down):
    def _A_ref(x, k_cache, v_cache, wq, wo):
        B, Sq, D = x.shape
        H, Dh = 32, 192
        q = (lambda x, *d: x.permute(*d))((x @ wq).reshape(B, Sq, H, Dh), 0, 2, 1, 3)
        scores = torch.einsum("bhqd,bhkd->bhqk", q, k_cache) * (Dh ** -0.5)
        p = _softmax(scores, axis=-1)
        o = torch.einsum("bhqk,bhkd->bhqd", p, v_cache)
        return (lambda x, *d: x.permute(*d))(o, 0, 2, 1, 3).reshape(B, Sq, H * Dh) @ wo

    def _B_ref(x, W_gate, W_up, W_down):
        gate = torch.einsum("bsd,df->bsf", x, W_gate)
        up = torch.einsum("bsd,df->bsf", x, W_up)
        gate = gate * (lambda x, dt: x.to(dt))(gate > 0, gate.dtype)
        h = gate * up
        return torch.einsum("bsf,fd->bsd", h, W_down)

    x = A_x
    xn = _layernorm(x, axis=-1)
    return x + _A_ref(xn, A_k_cache, A_v_cache, A_wq, A_wo) + _B_ref(xn, B_W_gate, B_W_up, B_W_down)
```

```python
import re

TRANS = ("v_exp_f32", "v_log_f32", "v_rcp_f32", "v_rsq_f32", "v_sqrt_f32", "v_sin_f32", "v_cos_f32")

def regs_of(tok):
    tok = tok.strip()
    tok = tok.lstrip("-")
    m = re.fullmatch(r"abs\((.*)\)", tok) or re.fullmatch(r"\|(.*)\|", tok)
    if m: tok = m.group(1)
    m = re.fullmatch(r"([vsa])(\d+)", tok)
    if m: return {(m.group(1), int(m.group(2)))}
    m = re.fullmatch(r"([vsa])\[(\d+):(\d+)\]", tok)
    if m: return {(m.group(1), i) for i in range(int(m.group(2)), int(m.group(3)) + 1)}
    if tok == "vcc": return {("s", "vcc")}
    if tok in ("vcc_lo", "vcc_hi"): return {("s", "vcc")}
    if tok in ("exec", "exec_lo", "exec_hi"): return {("s", "exec")}
    if tok == "m0": return {("s", "m0")}
    return set()

class Ins:
    def __init__(self, text):
        self.text = text
        t = text.split(";")[0].strip()
        self.label = None; self.op = None
        if not t or t.startswith("."):
            return
        if t.endswith(":"):
            self.label = t[:-1]; return
        parts = t.split(None, 1)
        self.op = op = parts[0]
        rest = parts[1] if len(parts) > 1 else ""
        ops = []; depth = 0; cur = ""
        for ch in rest:
            if ch in "[(": depth += 1
            if ch in "])": depth -= 1
            if ch == "," and depth == 0: ops.append(cur.strip()); cur = ""
            else: cur += ch
        if cur.strip(): ops.append(cur.strip())
        mods = ""
        if ops:
            last = ops[-1].split(None, 1)
            ops[-1] = last[0]
            mods = last[1] if len(last) > 1 else ""
        self.ops = ops; self.mods = mods
        R = [regs_of(o) for o in ops]
        U = lambda l: set().union(*l) if l else set()
        self.valu = op.startswith("v_")
        self.mfma = op.startswith("v_mfma")
        self.dot = op.startswith("v_dot")
        self.trans = any(op.startswith(x) for x in TRANS)
        self.dpp = "_dpp" in op
        self.perml = op.startswith("v_permlane")
        self.rdlane = op.startswith("v_readlane") or op.startswith("v_readfirstlane")
        self.vmem = op.startswith(("buffer_", "global_", "flat_"))
        self.ds = op.startswith("ds_")
        self.salu = op.startswith("s_")
        self.lds_dma = self.vmem and re.search(r"\blds\b", mods) is not None
        self.wide_store = self.vmem and "store" in op and ("x4" in op or "x3" in op)
        self.branch = op.startswith(("s_cbranch", "s_branch"))
        self.w = set(); self.r = set(); self.srcc = set(); self.sdata = set()
        if self.valu:
            if self.perml: self.w = U(R); self.r = U(R)
            else:
                self.w = set(R[0]); self.r = U(R[1:])
                if op.startswith(("v_fmac", "v_dot2c", "v_writelane")) or self.dpp: self.r |= R[0]
                if op.startswith(("v_add_co", "v_sub_co", "v_addc_co", "v_subb_co")): self.w |= R[1]; self.r = U(R[2:])
                if self.mfma: self.srcc = set(R[3])
                if op.startswith("v_cmpx"): self.w |= {("s", "exec")}
        elif self.vmem:
            if "load" in op and not self.lds_dma: self.w = set(R[0]); self.r = U(R[1:])
            else:
                self.r = U(R)
                if "store" in op: self.sdata = set(R[0]) if op.startswith("buffer") else set(R[1])
                if "atomic" in op and "sc0" in mods: self.w = set(R[0])
            if self.lds_dma: self.r |= {("s", "m0")}
        elif self.ds:
            if op.startswith(("ds_read", "ds_bpermute", "ds_permute", "ds_swizzle")) or "_rtn" in op: self.w = set(R[0]); self.r = U(R[1:])
            else: self.r = U(R)
        elif self.salu:
            if op.startswith(("s_cmp", "s_waitcnt", "s_nop", "s_barrier", "s_sleep", "s_setprio", "s_endpgm", "s_bitcmp")) or self.branch: self.r = U(R)
            else:
                self.w = set(R[0]) if R else set(); self.r = U(R[1:])
                if "saveexec" in op: self.w |= {("s", "exec")}
    def states(self):
        if self.op is None: return 0
        if self.op == "s_nop": return int(self.ops[0], 0) + 1
        return 1

def mfma_passes(op):
    if "16x16x32" in op or "16x16x16" in op: return 4
    if "32x32x16" in op or "32x32x8" in op: return 8
    raise ValueError(op)

def need(p, c):
    n = 0
    if c.op is None or p.op is None: return 0
    pv = {x for x in p.w if x[0] in "va"}; ps = {x for x in p.w if x[0] == "s"}
    if p.valu and not p.mfma:
        if c.dpp and pv & c.r: n = max(n, 2)
        if c.perml and pv & c.r: n = max(n, 2)
        if c.rdlane and pv & c.r: n = max(n, 1)
        if c.mfma and pv & c.r: n = max(n, 2)
        if c.valu and ps & c.r: n = max(n, 4 if (c.rdlane or c.op.startswith("v_writelane")) else 2)
        if c.vmem and ps & c.r: n = max(n, 5)
        if c.salu and ps & c.r: n = max(n, 1)
        if p.trans and c.valu and not c.trans and pv & c.r: n = max(n, 1)
        if p.dot and pv & (c.r | c.w):
            same_c = c.op == p.op and not (pv & set().union(*[regs_of(o) for o in c.ops[1:3]]))
            if not same_c: n = max(n, 3)
        if ("s", "exec") in ps:
            if c.dpp: n = max(n, 5)
            if c.mfma or c.perml or c.rdlane: n = max(n, 4)
    if p.mfma:
        ps_ = mfma_passes(p.op)
        big = {4: 8, 8: 12}[ps_]
        if c.mfma:
            ab = regs_of(c.ops[1]) | regs_of(c.ops[2])
            if pv & ab: n = max(n, big)
            if pv & c.srcc and not (c.srcc == pv and c.op == p.op): n = max(n, {4: 6, 8: 10}[ps_])
            if pv & c.w and not (pv & c.srcc): n = max(n, big)
        elif (c.valu or c.vmem or c.ds) and pv & (c.r | c.w): n = max(n, big)
        if c.valu and not c.mfma and p.srcc & c.w: n = max(n, {4: 3, 8: 7}[ps_])
    if p.salu and ("s", "m0") in p.w and c.lds_dma: n = max(n, 1)
    if p.wide_store and p.sdata & c.w: n = max(n, 2)
    return n

WINDOW = 14

class Asm:
    def __init__(self):
        self.lines = []
    def __call__(self, s):
        for l in s.split("\n"):
            self.lines.append(l)
    def fix(self):
        out = []
        for l in self.lines:
            c = Ins(l)
            if c.op is not None:
                dist = 0; pad = 0
                for p in reversed(out):
                    if p.op is None: continue
                    if p.op in ("s_branch", "s_endpgm", "s_setpc_b64"): break
                    k = need(p, c)
                    pad = max(pad, k - dist)
                    dist += p.states()
                    if dist >= WINDOW: break
                if pad > 0:
                    out.append(Ins(f"  s_nop {pad-1}"))
            out.append(c)
        labels = {x.label: i for i, x in enumerate(out) if x.label}
        errs = []
        def walk_back(i, dist, acc, depth):
            j = i
            while j >= 0 and dist < WINDOW:
                p = out[j]
                if p.op is not None:
                    if j != i and p.op in ("s_branch", "s_endpgm", "s_setpc_b64"): break
                    acc.append((p, dist)); dist += p.states()
                j -= 1
        def walk_fwd(j, prods, dist, depth, br):
            while j < len(out) and dist < WINDOW:
                c = out[j]
                if c.op is not None:
                    for p, d in prods:
                        if need(p, c) > d + dist:
                            errs.append(f"hazard via branch '{br.text.strip()}': '{p.text.strip()}' -> '{c.text.strip()}' needs {need(p,c)} has {d+dist}")
                    dist += c.states()
                    if c.branch and depth < 3:
                        walk_fwd(labels[c.ops[0]], prods, dist, depth + 1, br)
                    if c.op in ("s_branch", "s_endpgm", "s_setpc_b64"): break
                j += 1
        for i, b in enumerate(out):
            if b.op is not None and b.branch:
                prods = []
                walk_back(i, 0, prods, 0)
                prods = [(p, d) for p, d in prods if p is not b]
                walk_fwd(labels[b.ops[0]], prods, 0, 0, b)
        if errs:
            raise RuntimeError("\n".join(sorted(set(errs))))
        return "\n".join(x.text for x in out) + "\n"
```

```python
import sys, struct
from asmlib import Asm

NAME = "parallel_sum__mha_block_cached__glu_gated_reglu__decode_kernel"
HEADER = open("parallel_sum__mha_block_cached__glu_gated_reglu__decode.s.ref").read().split("; Override launch")[0]

def f32(x): return "0x%08x" % struct.unpack("<I", struct.pack("<f", x))[0]

FL, QB, XN, QS, SB, OB, WB, GB, LDS_END = 0, 256, 2048, 4608, 6144, 22528, 53248, 91648, 107008
F_Q, F_P, F_K, F_V = 0, 4, 16, 32
E3, E1, E4, E5, WS_END = 0x1000, 0x10000, 0x80000, 0x200000, 0x480000
STAMP = 0x500000
HEADB = 12582912
KVB = 402653184

def gen(N=5, NW=5, N2=11, LEAD=11, stamps=False, prefetch=True, pol="nt", hs="sc1", sleepg=1, bar_at=30):
    a = Asm()
    R = 12
    assert N <= LEAD < R and N2 <= LEAD
    a(HEADER.rstrip("\n"))
    a("; Override launch geometry by editing the next line (default: block=256,")
    a(f"; @launch grid=(256,1,1) block=(320,1,1) lds={LDS_END}")
    a('.amdgcn_target "amdgcn-amd-amdhsa--gfx950"')
    a(".text")
    a(f".globl {NAME}")
    a(".p2align 8")
    a(f".type {NAME},@function")
    a(f"{NAME}:")
    uid = [0]
    def lab(p):
        uid[0] += 1; return f"L_{p}_{uid[0]}"
    def srd(d, p, n):
        a(f"  s_mov_b32 s{d}, s{p}"); a(f"  s_mov_b32 s{d+1}, s{p+1}")
        a(f"  s_mov_b32 s{d+2}, {n}"); a(f"  s_mov_b32 s{d+3}, 0x20000")
    PX, PK, PV, PWQ, PWO, PWG, PWU, PWD, POUT, PWS = 36, 38, 40, 42, 44, 48, 50, 52, 54, 58
    nstamp = [0]
    def stamp(idx):
        if stamps:
            a("  s_memrealtime s[78:79]"); a("  s_waitcnt lgkmcnt(0)"); a(f"  s_mov_b32 s{80+idx}, s78")
    def stamp_flush():
        if stamps:
            srd(24, PWS, 0x1000000)
            a("  s_mov_b64 exec, -1")
            a("  s_mul_i32 s76, s2, 5"); a("  s_add_u32 s76, s76, s3"); a("  s_lshl_b32 s76, s76, 6"); a(f"  s_add_u32 s76, s76, {STAMP}")
            a("  s_getreg_b32 s95, hwreg(20)")
            for g in range(4):
                for k in range(4): a(f"  v_mov_b32 v{16+4*g+k}, s{80+4*g+k}")
            a("  v_mov_b32 v15, 0")
            a("  s_mov_b64 exec, 1")
            for g in range(4): a(f"  buffer_store_dwordx4 v[{16+4*g}:{19+4*g}], v15, s[24:27], s76 offen offset:{16*g}")
            a("  s_waitcnt vmcnt(0)")

    if stamps:
        a("  s_memrealtime s[80:81]")
    a("  s_cmp_ge_u32 s2, 256")
    a("  s_cbranch_scc1 L_end")
    a("  s_load_dwordx16 s[36:51], s[0:1], 0")
    a("  s_load_dwordx8 s[52:59], s[0:1], 64")
    if stamps:
        for k in range(82, 96): a(f"  s_mov_b32 s{k}, 0")
    a("  v_lshrrev_b32 v3, 6, v0")
    a("  v_and_b32 v1, 63, v0                 ; lane")
    a("  v_readfirstlane_b32 s3, v3           ; wave")
    a("  s_and_b32 s4, s2, 7                  ; x")
    a("  s_lshr_b32 s5, s2, 3                 ; j")
    a("  v_lshrrev_b32 v9, 3, v1")
    a("  v_and_b32 v10, 7, v1")
    VM = 4
    a("  v_and_b32 v3, 1, v10")
    a("  v_lshlrev_b32 v3, 4, v3")
    a("  v_mov_b32 v8, 0xffff")
    a("  v_lshlrev_b32 v8, v3, v8")
    a("  v_lshrrev_b32 v3, 1, v10")
    for k in range(4):
        a(f"  v_cmp_eq_u32 vcc, {k}, v3")
        a(f"  v_cndmask_b32 v{VM+k}, 0, v8, vcc")
    a("  v_lshrrev_b32 v3, 5, v1")
    a("  v_mul_u32_u24 v11, 768, v3")
    a("  v_lshl_add_u32 v11, v10, 5, v11")
    a("  v_and_b32 v3, 16, v1")
    a("  v_add_u32 v11, v11, v3")
    a("  v_lshlrev_b32 v12, 4, v1             ; lane*16")
    a("  s_mov_b32 s34, 0x00ff00ff")
    a("  s_mov_b32 s35, 0xff00ff00")
    a("  s_cmp_eq_u32 s3, 0")
    a("  s_cbranch_scc0 L_stream")

    def lds_wait(vaddr, off, val, vt, extra=None, sleep=1):
        L = lab("w"); D = lab("d")
        a("  s_mov_b32 s33, 0x100000")
        a(f"{L}:")
        a(f"  ds_read_b32 v{vt}, v{vaddr} offset:{off}")
        if extra: extra()
        a("  s_waitcnt lgkmcnt(0)")
        a(f"  v_readfirstlane_b32 s32, v{vt}")
        a(f"  s_cmp_ge_u32 s32, {val}")
        a(f"  s_cbranch_scc1 {D}")
        a(f"  s_sleep {sleep}")
        a("  s_sub_u32 s33, s33, 1")
        a(f"  s_cbranch_scc0 {L}")
        a(f"{D}:")
    def dppadd(op, d, ctrl):
        a(f"  {op}_dpp v{d}, v{d}, v{d} {ctrl} row_mask:0xf bank_mask:0xf")
    def swapred(op, regs, tmp, which):
        for i, d in enumerate(regs): a(f"  v_mov_b32 v{tmp+i}, v{d}")
        for i, d in enumerate(regs): a(f"  v_permlane{which}_swap_b32 v{d}, v{tmp+i}")
        if op:
            for i, d in enumerate(regs): a(f"  {op} v{d}, v{d}, v{tmp+i}")
    def allreduce(op, regs, tmp, upto=64):
        for ctrl in ("quad_perm:[1,0,3,2]", "quad_perm:[2,3,0,1]", "row_half_mirror", "row_mirror"):
            for d in regs: dppadd(op, d, ctrl)
        swapred(op, regs, tmp, 16)
        if upto == 64: swapred(op, regs, tmp, 32)
    def parreduce(regs, tmp):
        for ctrl in ("quad_perm:[2,3,0,1]", "row_ror:4", "row_ror:8"):
            for d in regs: dppadd("v_add_f32", d, ctrl)
        swapred("v_add_f32", regs, tmp, 16)

    TAG = 6
    WQ = 16
    XF = 136
    T = 146
    a("  v_lshlrev_b32 v13, 2, v1             ; lane*4")
    a("  v_mul_u32_u24 v14, 12288, v9")
    a("  v_lshl_add_u32 v14, v10, 4, v14")
    a("  s_and_b32 s28, s5, 7")
    a("  s_mul_i32 s29, s28, 80")
    a("  s_mul_i32 s28, s29, 12288")
    a("  s_and_b32 s30, s5, 24")
    a("  s_add_u32 s30, s30, s4")
    a("  s_mul_i32 s30, s30, 384")
    a("  s_add_u32 s28, s28, s30")
    a("  s_waitcnt lgkmcnt(0)")
    a(f"  s_load_dword s{TAG}, s[{PWS}:{PWS+1}], 0")
    srd(8, PX, 1280); srd(12, PWQ, 7864320); srd(16, PWS, WS_END)
    for k in range(5): a(f"  buffer_load_dword v{T+k}, v13, s[8:11], 0 offen offset:{256*k}")
    n = 0
    for i in range(10):
        for t in range(3):
            if n == bar_at: a("  s_barrier")
            r = WQ + 12*i + 4*t
            a(f"  buffer_load_dwordx4 v[{r}:{r+3}], v14, s[12:15], s28 offen offset:{128*t} {pol}")
            n += 1
        if i < 9: a("  s_add_u32 s28, s28, 98304")
    if bar_at >= 30: a("  s_barrier")
    stamp(1)
    a(f"  s_mov_b32 s7, {f32(1/640)}")
    a("  s_waitcnt vmcnt(30)")
    for k in range(5):
        a(f"  v_lshlrev_b32 v{XF+2*k}, 16, v{T+k}")
        a(f"  v_and_b32 v{XF+2*k+1}, 0xffff0000, v{T+k}")
    S = T+5
    a(f"  v_add_f32 v{S}, v{XF}, v{XF+1}")
    for k in range(2, 10): a(f"  v_add_f32 v{S}, v{S}, v{XF+k}")
    allreduce("v_add_f32", [S], T+6)
    a(f"  v_mul_f32 v{S}, s7, v{S}             ; mean")
    Q = T+7
    a(f"  v_sub_f32 v{T}, v{XF}, v{S}")
    a(f"  v_mul_f32 v{Q}, v{T}, v{T}")
    for k in range(1, 10):
        a(f"  v_sub_f32 v{T+(k&1)}, v{XF+k}, v{S}")
        a(f"  v_fmac_f32 v{Q}, v{T+(k&1)}, v{T+(k&1)}")
    allreduce("v_add_f32", [Q], T+6)
    a(f"  v_mul_f32 v{Q}, s7, v{Q}             ; var")
    a(f"  v_cvt_pk_bf16_f32 v{T}, v{S}, v{Q}")
    a(f"  v_lshlrev_b32 v{S}, 16, v{T}         ; bf16(mean)")
    a(f"  v_and_b32 v{Q}, 0xffff0000, v{T}     ; bf16(var)")
    a(f"  v_add_f32 v{Q}, {f32(1e-5)}, v{Q}")
    a(f"  v_cvt_pk_bf16_f32 v{Q}, v{Q}, v{Q}")
    a(f"  v_lshlrev_b32 v{Q}, 16, v{Q}")
    a(f"  v_sqrt_f32 v{Q}, v{Q}")
    a(f"  v_cvt_pk_bf16_f32 v{Q}, v{Q}, v{Q}")
    a(f"  v_lshlrev_b32 v{Q}, 16, v{Q}")
    a(f"  v_rcp_f32 v{Q}, v{Q}")
    a(f"  v_lshlrev_b32 v15, 3, v1")
    for k in range(5):
        x0, x1 = XF+2*k, XF+2*k+1
        a(f"  v_sub_f32 v{x0}, v{x0}, v{S}")
        a(f"  v_sub_f32 v{x1}, v{x1}, v{S}")
        a(f"  v_cvt_pk_bf16_f32 v{x1}, v{x0}, v{x1}")
        a(f"  v_lshlrev_b32 v{x0}, 16, v{x1}")
        a(f"  v_and_b32 v{x1}, 0xffff0000, v{x1}")
        a(f"  v_mul_f32 v{x0}, v{x0}, v{Q}")
        a(f"  v_mul_f32 v{x1}, v{x1}, v{Q}")
        a(f"  v_cvt_pk_bf16_f32 v{x0}, v{x0}, v{x0}")
        a(f"  v_cvt_pk_bf16_f32 v{x1}, v{x1}, v{x1}")
        a(f"  ds_write_b64 v15, v[{x0}:{x1}] offset:{XN+512*k}")
    a(f"  v_add_u32 v15, s29, v9")
    a(f"  v_lshlrev_b32 v15, 2, v15")
    a(f"  v_add_u32 v15, {XN}, v15")
    a("  s_waitcnt lgkmcnt(0)")
    a(f"  s_add_u32 s{TAG}, s{TAG}, 0x9e3779b9")
    for k in range(5): a(f"  ds_read2_b32 v[{XF+2*k}:{XF+2*k+1}], v15 offset0:{16*k} offset1:{16*k+8}")
    AC = T+2
    AO = T+14
    a("  s_waitcnt lgkmcnt(0)")
    stamp(2)
    for i in range(10):
        ao = AO + 4*(i & 1)
        for k in range(4): a(f"  v_and_b32 v{ao+k}, v{XF+i}, v{VM+k}")
        a(f"  s_waitcnt vmcnt({27-3*i})")
        for t in range(3):
            r = WQ + 12*i + 4*t
            c = f"v[{AC+4*t}:{AC+4*t+3}]"
            a(f"  v_mfma_f32_16x16x32_bf16 {c}, v[{ao}:{ao+3}], v[{r}:{r+3}], {c if i else 0}")
    a("  v_mul_u32_u24 v14, 12, v1            ; lane*12")
    a("  s_lshl_b32 s28, s4, 5")
    a("  s_add_u32 s28, s28, s5")
    a("  s_lshl_b32 s31, s28, 10")
    a(f"  s_add_u32 s30, s31, {E1}")
    a("  s_mov_b64 exec, s[34:35]")
    for t in range(3): a(f"  ds_write_b128 v11, v[{AC+4*t}:{AC+4*t+3}] offset:{QS+256*t}")
    a("  s_mov_b64 exec, -1")
    G = 16
    for k in range(3): a(f"  ds_read_b32 v{G+k}, v14 offset:{QS+4*k}")
    for k in range(3): a(f"  ds_read_b32 v{G+4+k}, v14 offset:{QS+768+4*k}")
    a(f"  v_mov_b32 v{G+3}, s{TAG}")
    a("  s_waitcnt lgkmcnt(0)")
    for k in range(3): a(f"  v_add_f32 v{G+k}, v{G+k}, v{G+4+k}")
    a(f"  buffer_store_dwordx4 v[{G}:{G+3}], v12, s[16:19], s30 offen {hs}")
    stamp(3)

    def gather(nl, voff, soffs, dst):
        L = lab("g"); D = lab("gd")
        a("  s_mov_b32 s33, 0x10000")
        a(f"{L}:")
        for i in range(nl):
            s, imm = soffs[i]
            a(f"  buffer_load_dwordx4 v[{dst+4*i}:{dst+4*i+3}], v{voff}, s[16:19], {s} offen offset:{imm} {hs}")
        if nl == 1:
            a("  s_waitcnt vmcnt(0)")
            a(f"  v_cmp_ne_u32 vcc, s{TAG}, v{dst+3}")
        else:
            for i in range(nl):
                a(f"  s_waitcnt vmcnt({nl-1-i})")
                if i == 0: a(f"  v_xor_b32 v3, s{TAG}, v{dst+3}")
                else:
                    a(f"  v_xor_b32 v2, s{TAG}, v{dst+4*i+3}")
                    a(f"  v_or_b32 v3, v3, v2")
            a("  v_cmp_ne_u32 vcc, 0, v3")
        a("  s_and_b64 exec, exec, vcc")
        a(f"  s_cbranch_scc0 {D}")
        if sleepg: a(f"  s_sleep {sleepg}")
        a("  s_sub_u32 s33, s33, 1")
        a(f"  s_cbranch_scc0 {L}")
        a(f"{D}:")
        a("  s_mov_b64 exec, -1")

    G = 32
    a("  s_lshl_b32 s28, s4, 15")
    a(f"  s_add_u32 s28, s28, {E1}")
    a("  v_mul_u32_u24 v15, 6, v1")
    a("  v_mov_b32 v13, 0")
    a("  s_mov_b32 s30, 0")
    a("L_hq:")
    a("  s_add_u32 s29, s28, 4096")
    gather(8, 12, [("s28", 1024*i) for i in range(4)] + [("s29", 1024*i) for i in range(4)], G)
    for i in range(1, 8):
        for k in range(3): a(f"  v_add_f32 v{G+k}, v{G+k}, v{G+4*i+k}")
    a(f"  v_cvt_pk_bf16_f32 v{G}, v{G}, v{G+1}")
    a(f"  v_cvt_pk_bf16_f32 v{G+2}, v{G+2}, v{G+2}")
    a("  s_add_u32 s30, s30, 1")
    a("  v_mov_b32 v3, s30")
    a(f"  ds_write_b16 v15, v{G} offset:{QB}")
    a(f"  ds_write_b16_d16_hi v15, v{G} offset:{QB+2}")
    a(f"  ds_write_b16 v15, v{G+2} offset:{QB+4}")
    a(f"  ds_write_b32 v13, v3 offset:{FL+F_Q}")
    if stamps:
        a("  s_cmp_eq_u32 s30, 1"); a("  s_cbranch_scc0 L_nst4"); stamp(4); a("L_nst4:")
    a("  v_add_u32 v15, 384, v15")
    a("  s_add_u32 s28, s28, 8192")
    a("  s_cmp_lt_u32 s30, 4")
    a("  s_waitcnt lgkmcnt(0)")
    a("  s_cbranch_scc1 L_hq")
    stamp(5)

    SC = 16
    a("  v_lshlrev_b32 v15, 9, v9")
    a("  v_lshl_add_u32 v15, v10, 4, v15")
    a(f"  v_add_u32 v15, {SB}, v15")
    a("  v_and_b32 v2, 31, v1")
    a("  v_lshlrev_b32 v48, 4, v2             ; (lane&31)*16")
    a("  s_lshl_b32 s28, s4, 9")
    a(f"  s_add_u32 s28, s28, {E3}            ; E3 + x*512")
    a("  s_lshl_b32 s29, s5, 4")
    a("  v_mov_b32 v49, s29                   ; j*16")
    a(f"  s_mov_b32 s7, {f32(192**-0.5)}")
    a(f"  s_mov_b32 s21, {f32(1.4426950408889634)}")
    a("  s_mov_b32 s30, 0")
    a("  v_mov_b32 v50, 0                     ; 4*round")
    a("L_hk:")
    lds_wait(50, FL+F_K, 4, 3, sleep=8)
    for i in range(4): a(f"  ds_read_b128 v[{SC+4*i}:{SC+4*i+3}], v15 offset:{4096*i}")
    a("  s_waitcnt lgkmcnt(0)")
    for k in range(8):
        x0, x1 = SC+2*k, SC+2*k+1
        a(f"  v_cvt_pk_bf16_f32 v{x1}, v{x0}, v{x1}")
        a(f"  v_lshlrev_b32 v{x0}, 16, v{x1}")
        a(f"  v_and_b32 v{x1}, 0xffff0000, v{x1}")
        a(f"  v_mul_f32 v{x0}, s7, v{x0}")
        a(f"  v_mul_f32 v{x1}, s7, v{x1}")
        a(f"  v_cvt_pk_bf16_f32 v{x1}, v{x0}, v{x1}")
        a(f"  v_lshlrev_b32 v{x0}, 16, v{x1}")
        a(f"  v_and_b32 v{x1}, 0xffff0000, v{x1}")
    M = 52; Ls = 53
    a(f"  v_max_f32 v{M}, v{SC}, v{SC+1}")
    for k in range(1, 8): a(f"  v_max3_f32 v{M}, v{M}, v{SC+2*k}, v{SC+2*k+1}")
    allreduce("v_max_f32", [M], 56)
    for k in range(16):
        a(f"  v_sub_f32 v{32+k}, v{SC+k}, v{M}")
        a(f"  v_mul_f32 v{32+k}, s21, v{32+k}")
        a(f"  v_exp_f32 v{32+k}, v{32+k}")
    a(f"  v_add_f32 v{Ls}, v32, v33")
    for k in range(2, 16): a(f"  v_add_f32 v{Ls}, v{Ls}, v{32+k}")
    allreduce("v_add_f32", [Ls], 56)
    a(f"  v_mov_b32 v54, 0")
    a(f"  v_mov_b32 v55, s{TAG}")
    a("  s_mov_b64 exec, 1")
    a(f"  buffer_store_dwordx4 v[52:55], v49, s[16:19], s28 offen {hs}")
    a("  s_mov_b64 exec, -1")
    gather(1, 48, [("s28", 0)], 60)
    a("  v_mov_b32 v64, v60")
    allreduce("v_max_f32", [64], 56, upto=32)
    a("  v_sub_f32 v60, v60, v64")
    a("  v_mul_f32 v60, s21, v60")
    a("  v_exp_f32 v60, v60")
    a("  v_mul_f32 v61, v61, v60")
    allreduce("v_add_f32", [61], 56, upto=32)
    a("  v_rcp_f32 v62, v61")
    a("  v_fma_f32 v63, -v61, v62, 1.0")
    a("  v_fma_f32 v62, v63, v62, v62            ; refined 1/L")
    for k in range(16):
        a(f"  v_sub_f32 v{32+k}, v{SC+k}, v64")
        a(f"  v_mul_f32 v{32+k}, s21, v{32+k}")
        a(f"  v_exp_f32 v{32+k}, v{32+k}")
    for k in range(16):
        a(f"  v_mul_f32 v{32+k}, v{32+k}, v62")
        a(f"  v_cvt_pk_bf16_f32 v{32+k}, v{32+k}, v{32+k}")
    a("  s_add_u32 s30, s30, 1")
    a("  v_mov_b32 v3, s30")
    for i in range(4): a(f"  ds_write_b128 v15, v[{32+4*i}:{35+4*i}] offset:{4096*i}")
    a(f"  ds_write_b32 v13, v3 offset:{FL+F_P}")
    a("  s_waitcnt lgkmcnt(0)")
    a("  v_add_u32 v15, 128, v15")
    a("  v_add_u32 v50, 4, v50")
    a("  s_add_u32 s28, s28, 4096")
    a("  s_cmp_lt_u32 s30, 4")
    a("  s_cbranch_scc1 L_hk")
    stamp(6)

    a("  s_and_b32 s28, s5, 15")
    a("  s_mul_i32 s28, s28, 40")
    a("  v_add_u32 v15, s28, v9")
    a("  v_lshlrev_b32 v15, 2, v15")
    a(f"  v_add_u32 v15, {XN}, v15")
    for k in range(5): a(f"  ds_read_b32 v{XF+k}, v15 offset:{32*k}")
    a(f"  v_add_u32 v15, {GB}, v12")
    for q in range(15): a(f"  ds_read_b128 v[{16+4*q}:{19+4*q}], v15 offset:{1024*q}")
    a("  s_waitcnt lgkmcnt(0)")
    for i in range(5):
        ao = AO + 4*(i & 1)
        for k in range(4): a(f"  v_and_b32 v{ao+k}, v{XF+i}, v{VM+k}")
        for t in range(3):
            r = 16 + 12*i + 4*t
            cb = 80 + 12*(i & 3) + 4*t
            c = f"v[{cb}:{cb+3}]"
            a(f"  v_mfma_f32_16x16x32_bf16 {c}, v[{ao}:{ao+3}], v[{r}:{r+3}], {c if i == 4 else 0}")
    a("  s_mov_b64 exec, s[34:35]")
    for i in (1, 2, 3, 0):
        for t in range(3):
            cb = 80 + 12*i + 4*t
            a(f"  ds_write_b128 v11, v[{cb}:{cb+3}] offset:{OB+1536*i+256*t}")
    a("  s_mov_b64 exec, -1")

    Y = 136
    WR = 16
    WP = 46
    a(f"  v_add_u32 v14, {OB}, v14")
    a("  v_lshlrev_b32 v15, 2, v1")
    a(f"  v_add_u32 v15, {WB}, v15")
    a("  v_lshrrev_b32 v2, 1, v1")
    a("  v_and_b32 v3, 1, v1")
    a("  v_lshlrev_b32 v146, 10, v2")
    a("  v_lshl_add_u32 v146, v3, 4, v146")
    a("  v_mul_u32_u24 v147, 5120, v2")
    a("  v_lshl_add_u32 v147, v3, 4, v147")
    a("  s_lshl_b32 s22, s2, 3")
    a("  v_lshl_add_u32 v148, v3, 2, s22")
    a("  buffer_load_dword v149, v148, s[8:11], 0 offen")
    srd(12, POUT, 1280)
    a(f"  s_add_u32 s31, s31, {E4}")
    a("  s_lshl_b32 s28, s4, 15")
    a("  s_lshl_b32 s29, s5, 5")
    a("  s_add_u32 s28, s28, s29")
    a(f"  s_add_u32 s28, s28, {E4}")
    a("  s_mul_i32 s23, s2, 5120")
    a(f"  s_add_u32 s23, s23, {E5}")
    a("  s_lshl_b32 s22, s2, 5")
    a(f"  s_add_u32 s22, s22, {E5}")
    a("  s_mov_b32 s20, 0x05040100")
    a("  s_mov_b32 s21, 0x07060302")
    a("  s_mov_b32 s30, 0")
    a("  v_mov_b32 v150, 0                    ; 4*it")
    for k in range(10): a(f"  v_mov_b32 v{Y+k}, 0")
    a("L_hc:")
    for q in range(15): a(f"  ds_read2st64_b32 v[{WR+2*q}:{WR+2*q+1}], v15 offset0:{2*q} offset1:{2*q+1}")
    a("  s_waitcnt lgkmcnt(0)")
    pairs = [(0, 1), (3, 4), (2, 5)]
    for pi, (ra, rb) in enumerate(pairs):
        for k in range(5):
            a(f"  v_perm_b32 v{WP+10*pi+2*k}, v{WR+5*rb+k}, v{WR+5*ra+k}, s20")
            a(f"  v_perm_b32 v{WP+10*pi+2*k+1}, v{WR+5*rb+k}, v{WR+5*ra+k}, s21")
    a("  s_cmp_eq_u32 s30, 0")
    a("  s_cbranch_scc1 L_hc_go")
    lds_wait(150, FL+F_V-4, 4, 3, sleep=1)
    a("L_hc_go:")
    if stamps:
        a("  s_cmp_eq_u32 s30, 4"); a("  s_cbranch_scc0 L_nst7"); stamp(7); a("L_nst7:")
    O = 80
    for k in range(3):
        if k: a(f"  v_add_u32 v{2+(k&1)}, {4*k}, v14")
        va = 14 if k == 0 else 2+(k&1)
        for p in range(4): a(f"  ds_read2st64_b32 v[{O+8*k+2*p}:{O+8*k+2*p+1}], v{va} offset0:{6*p} offset1:{6*p+3}")
    a(f"  v_mov_b32 v107, s{TAG}")
    for k in range(3):
        a(f"  s_waitcnt lgkmcnt({8-4*k})")
        b = O+8*k
        a(f"  v_pk_add_f32 v[{b}:{b+1}], v[{b}:{b+1}], v[{b+2}:{b+3}]")
        a(f"  v_pk_add_f32 v[{b+4}:{b+5}], v[{b+4}:{b+5}], v[{b+6}:{b+7}]")
        a(f"  v_pk_add_f32 v[{b}:{b+1}], v[{b}:{b+1}], v[{b+4}:{b+5}]")
        a(f"  v_add_f32 v{104+k}, v{b}, v{b+1}")
    a(f"  buffer_store_dwordx4 v[104:107], v12, s[16:19], s31 offen {hs}")
    gather(1, 146, [("s28", 0)], 108)
    if stamps:
        a("  s_cmp_eq_u32 s30, 4"); a("  s_cbranch_scc0 L_nst8"); stamp(8); a("L_nst8:")
    parreduce([108, 109, 110], 112)
    swapred(None, [108, 109, 110], 112, 32)
    a("  s_cmp_eq_u32 s30, 0")
    a("  s_cbranch_scc1 L_hc_ffn")
    for k in range(3): a(f"  v_add_f32 v{108+k}, v{108+k}, v{112+k}")
    a("L_hc_pack:")
    a("  v_cvt_pk_bf16_f32 v108, v108, v109")
    a("  v_cvt_pk_bf16_f32 v110, v110, v110")
    a("  v_readlane_b32 s24, v108, 0")
    a("  v_readlane_b32 s25, v108, 1")
    a("  v_readlane_b32 s26, v110, 0")
    a("  v_readlane_b32 s27, v110, 1")
    for k in range(10): a(f"  v_dot2c_f32_bf16 v{Y+k}, s24, v{WP+k}")
    a("  s_pack_ll_b32_b16 s26, s26, s27")
    for k in range(10): a(f"  v_dot2c_f32_bf16 v{Y+k}, s25, v{WP+10+k}")
    for k in range(10): a(f"  v_dot2c_f32_bf16 v{Y+k}, s26, v{WP+20+k}")
    a("  s_and_b32 s29, s30, 3")
    a("  s_cbranch_scc1 L_hc_next")
    for k in range(5):
        b = 80 + 4*k
        a(f"  v_mov_b32 v{b}, v{Y+2*k}"); a(f"  v_mov_b32 v{b+1}, v{Y+2*k+1}")
        a(f"  v_mov_b32 v{b+2}, s{TAG}"); a(f"  v_mov_b32 v{b+3}, s{TAG}")
        if k == 4: a("  s_add_u32 s29, s23, 4096")
        a(f"  buffer_store_dwordx4 v[{b}:{b+3}], v12, s[16:19], {'s23' if k < 4 else 's29'} offen offset:{1024*(k&3)} {hs}")
    if stamps:
        a("  s_cmp_eq_u32 s30, 4"); a("  s_cbranch_scc0 L_nst9"); stamp(9); a("L_nst9:")
    a("  s_cmp_ge_u32 s2, 160")
    a("  s_cbranch_scc1 L_hc_fin")
    for i in range(8): a(f"  s_add_u32 s{60+i}, s22, {163840*i}")
    G = 100
    gather(8, 147, [(f"s{60+i}", 0) for i in range(8)], G)
    for st in (4, 2, 1):
        for i in range(st): a(f"  v_pk_add_f32 v[{G+4*i}:{G+4*i+1}], v[{G+4*i}:{G+4*i+1}], v[{G+4*(i+st)}:{G+4*(i+st)+1}]")
    parreduce([G, G+1], G+4)
    swapred("v_add_f32", [G, G+1], G+4, 32)
    a(f"  v_cvt_pk_bf16_f32 v{G}, v{G}, v{G+1}")
    a(f"  v_lshlrev_b32 v{G+1}, 16, v{G}")
    a(f"  v_and_b32 v{G+2}, 0xffff0000, v{G}")
    a(f"  v_lshlrev_b32 v{G+3}, 16, v149")
    a(f"  v_and_b32 v{G+4}, 0xffff0000, v149")
    a(f"  v_add_f32 v{G+1}, v{G+1}, v{G+3}")
    a(f"  v_add_f32 v{G+2}, v{G+2}, v{G+4}")
    a(f"  v_cvt_pk_bf16_f32 v{G+2}, v{G+1}, v{G+2}")
    a(f"  v_lshlrev_b32 v{G+1}, 16, v{G+2}")
    a(f"  v_and_b32 v{G+2}, 0xffff0000, v{G+2}")
    a(f"  v_lshlrev_b32 v{G+3}, 16, v151")
    a(f"  v_and_b32 v{G+4}, 0xffff0000, v151")
    a(f"  v_add_f32 v{G+1}, v{G+1}, v{G+3}")
    a(f"  v_add_f32 v{G+2}, v{G+2}, v{G+4}")
    a(f"  v_cvt_pk_bf16_f32 v{G+1}, v{G+1}, v{G+2}")
    a(f"  v_mov_b32 v151, v{G}")
    a("  s_cmp_eq_u32 s30, 0")
    a("  s_cbranch_scc1 L_hc_fin")
    a("  s_mov_b64 exec, 3")
    a(f"  buffer_store_dword v{G+1}, v148, s[12:15], 0 offen")
    a("  s_cmp_eq_u32 s2, 0")
    a("  s_cbranch_scc0 L_hc_fin")
    a("  s_mov_b64 exec, 1")
    a(f"  v_mov_b32 v107, s{TAG}")
    a(f"  buffer_store_dword v107, v13, s[16:19], 0 offen")
    a("L_hc_fin:")
    a("  s_mov_b64 exec, -1")
    for k in range(10): a(f"  v_mov_b32 v{Y+k}, 0")
    a(f"  s_add_u32 s23, s23, {256*5120}")
    a(f"  s_add_u32 s22, s22, {256*5120}")
    a("L_hc_next:")
    a("  v_add_u32 v14, 6144, v14")
    a("  v_add_u32 v15, 7680, v15")
    a("  v_add_u32 v150, 4, v150")
    a("  s_add_u32 s31, s31, 0x40000")
    a("  s_add_u32 s28, s28, 0x40000")
    a("  s_add_u32 s30, s30, 1")
    a("  s_cmp_lt_u32 s30, 5")
    a("  s_cbranch_scc1 L_hc")
    stamp(10)
    stamp_flush()
    a("  s_endpgm")
    a("L_hc_ffn:")
    for k in range(3):
        a(f"  v_cvt_pk_bf16_f32 v{112+k}, v{108+k}, v{112+k}")
        a(f"  v_lshlrev_b32 v{108+k}, 16, v{112+k}")
        a(f"  v_and_b32 v{112+k}, 0xffff0000, v{112+k}")
        a(f"  v_cmp_lt_f32 vcc, 0, v{108+k}")
        a(f"  v_cndmask_b32 v116, 0, 1.0, vcc")
        a(f"  v_mul_f32 v{108+k}, v{108+k}, v116")
        a(f"  v_mul_f32 v{108+k}, v{108+k}, v{112+k}")
    a("  s_branch L_hc_pack")

    a(".p2align 6")
    a("L_stream:")
    RING = 16; QF = 64; KA = 76; KC = 77
    AOP = 84; PA = 88; PB = 92; ACC = 96
    a("  s_setprio 1")
    a("  s_sub_u32 s6, s3, 1                  ; w")
    a("  v_mov_b32 v13, 0")
    a("  v_lshlrev_b32 v3, 2, v1")
    a(f"  ds_write_b32 v3, v13 offset:{FL}")
    if prefetch:
        a("  s_cmp_eq_u32 s6, 0")
        a("  s_cbranch_scc0 L_nopf")
        a("  s_getpc_b64 s[24:25]")
        a("L_pc:")
        a(f"  s_sub_u32 s24, s24, L_pc-{NAME}")
        a("  s_subb_u32 s25, s25, 0")
        a("  v_lshlrev_b32 v3, 7, v1")
        a(f"  v_min_u32 v3, L_end-{NAME}, v3")
        a("  global_load_dword v14, v3, s[24:25]")
        a("L_nopf:")
    a("  v_mul_u32_u24 v2, 384, v9")
    a("  v_lshl_add_u32 v2, v10, 4, v2")
    a("  v_mul_u32_u24 v15, 3072, v9")
    a("  v_lshl_add_u32 v15, v10, 4, v15")
    a("  s_lshl_b32 s7, s6, 12")
    a("  v_lshl_add_u32 v109, v9, 9, s7")
    a(f"  v_add_u32 v109, {SB}, v109")
    a("  v_lshl_add_u32 v108, v10, 2, v109")
    a("  v_lshlrev_b32 v110, 4, v10")
    a("  s_mul_i32 s7, s6, 1536")
    a(f"  s_add_u32 s7, s7, {OB+6144}")
    a("  v_add_u32 v111, s7, v11")
    a("  v_mov_b32 v112, 0                    ; 4*round")
    a("  v_mov_b32 v113, 1")
    for s in range(8):
        a(f"  s_mov_b32 s{60+2*s}, {hex(0x01010101 << s)}")
        a(f"  s_mov_b32 s{61+2*s}, {hex(0x01010101 << s)}")
    a(f"  s_mul_i32 s29, s4, {HEADB}")
    a("  s_lshl_b32 s7, s5, 2")
    a("  s_add_u32 s7, s7, s6")
    a("  s_mul_i32 s7, s7, 3072")
    a("  s_add_u32 s29, s29, s7")
    a("  s_mov_b32 s28, s29")
    a("  s_waitcnt lgkmcnt(0)")
    srd(8, PK, KVB)
    srd(12, PWO, 7864320); srd(16, PWD, 1966080)
    a("  s_cmp_lt_u32 s5, 16")
    a(f"  s_cselect_b32 s20, s{PWG}, s{PWU}")
    a(f"  s_cselect_b32 s21, s{PWG+1}, s{PWU+1}")
    a("  s_mov_b32 s22, 1966080"); a("  s_mov_b32 s23, 0x20000")
    a("  s_lshl_b32 s24, s6, 3"); a("  s_add_u32 s24, s24, s4"); a("  s_mul_i32 s24, s24, 192")
    a("  s_mul_i32 s25, s5, 6"); a("  s_add_u32 s24, s24, s25"); a("  s_mul_i32 s24, s24, 1280")
    a("  s_mul_i32 s26, s4, 192"); a("  s_add_u32 s26, s26, s25"); a("  s_mul_i32 s26, s26, 1280")
    a("  s_lshl_b32 s7, s6, 11"); a("  s_add_u32 s26, s26, s7")
    a("  s_and_b32 s27, s5, 15"); a("  s_mul_i32 s27, s27, 122880"); a("  s_mul_i32 s25, s4, 384"); a("  s_add_u32 s27, s27, s25")
    a("  s_barrier")
    stamp(1)
    def pace(n): a(f"  s_waitcnt vmcnt({n-1})")
    a("  s_mul_i32 s25, s6, 24576"); a("  s_add_u32 s25, s25, s27")
    a("  s_mul_i32 s31, s6, 3072"); a(f"  s_add_u32 s31, s31, {GB}")
    for t in range(3):
        a("  s_mov_b32 m0, s31")
        pace(NW)
        a(f"  buffer_load_dwordx4 v15, s[20:23], s25 offen {pol} lds")
        a("  s_add_u32 s25, s25, 128"); a("  s_add_u32 s31, s31, 1024")
    a("  s_cmp_eq_u32 s6, 3")
    a("  s_cbranch_scc1 L_nogu")
    a("  s_lshl_b32 s25, s6, 7"); a("  s_add_u32 s25, s25, s27"); a("  s_add_u32 s25, s25, 98304")
    a("  s_lshl_b32 s31, s6, 10"); a(f"  s_add_u32 s31, s31, {GB+12288}")
    a("  s_mov_b32 m0, s31")
    pace(NW)
    a(f"  buffer_load_dwordx4 v15, s[20:23], s25 offen {pol} lds")
    a("L_nogu:")
    a(f"  s_add_u32 s31, s7, {WB}")
    a("  s_mov_b32 m0, s31")
    pace(NW)
    a(f"  buffer_load_dwordx4 v12, s[16:19], s26 offen {pol} lds")
    a("  s_cmp_eq_u32 s6, 3")
    a("  s_cselect_b32 exec_hi, 0, -1")
    pace(NW)
    a(f"  buffer_load_dwordx4 v12, s[16:19], s26 offen offset:1024 {pol} lds")
    a("  s_mov_b64 exec, -1")
    a("  s_mul_i32 s31, s6, 7680"); a(f"  s_add_u32 s31, s31, {WB+7680}")
    a("  s_mov_b32 m0, s31")
    for n in range(8):
        if n == 4:
            a("  s_add_u32 s24, s24, 4096"); a("  s_add_u32 s31, s31, 4096"); a("  s_mov_b32 m0, s31")
        if n == 7: a("  s_mov_b32 exec_hi, 0")
        pace(NW)
        a(f"  buffer_load_dwordx4 v12, s[12:15], s24 offen offset:{1024*(n&3)} {pol} lds")
    a("  s_mov_b64 exec, -1")
    stamp(2)

    SMALL = 393216; BIG = SMALL + 7*HEADB
    def issue(k, cross):
        t = k % 3; r = RING + 4*(k % R)
        a(f"  buffer_load_dwordx4 v[{r}:{r+3}], v2, s[8:11], s28 offen offset:{128*t} {pol}")
        if t == 2:
            if (k // 3) % 8 == 7: cross()
            else: a(f"  s_add_u32 s28, s28, {SMALL}")
    for k in range(LEAD):
        pace(N)
        issue(k, None)
    stamp(3)
    a("  s_mov_b32 s30, 0")
    a("L_k:")
    a("  s_and_b32 s31, s30, 3")
    a("  s_cbranch_scc1 L_k_body")
    a("  s_lshr_b32 s31, s30, 2")
    a("  s_add_u32 s31, s31, 1")
    def rq():
        for t in range(3): a(f"  ds_read_b128 v[{QF+4*t}:{QF+4*t+3}], v110 offset:{QB+128*t}")
    lds_wait(13, FL+F_Q, "s31", 3, extra=rq)
    a("  v_add_u32 v110, 384, v110")
    if stamps:
        a("  s_cmp_eq_u32 s30, 0"); a("  s_cbranch_scc0 L_k_body"); stamp(4)
    a("L_k_body:")
    def crossK():
        a("  s_and_b32 s31, s30, 3")
        a("  s_cmp_eq_u32 s31, 3")
        a(f"  s_cselect_b32 s31, {BIG}, s77")
        a("  s_add_u32 s28, s28, s31")
        a("  s_cmp_eq_u32 s30, 15")
        a("  s_cselect_b32 s28, s29, s28")
        a(f"  s_cselect_b32 s8, s{PV}, s8")
        a(f"  s_cselect_b32 s9, s{PV+1}, s9")
    a(f"  s_mov_b32 s77, {SMALL}")
    for k in range(24):
        t = k % 3; i = k // 3; r = RING + 4*(k % R)
        pace(N)
        issue(k + LEAD, crossK)
        if t == 0: a(f"  v_mov_b32 v{KA}, 0")
        for e in range(4): a(f"  v_dot2c_f32_bf16 v{KA}, v{r+e}, v{QF+4*t+e}")
        if t == 2:
            dppadd("v_add_f32", KA, "quad_perm:[1,0,3,2]")
            dppadd("v_add_f32", KA, "quad_perm:[2,3,0,1]")
            dppadd("v_add_f32", KA, "row_half_mirror")
            a(f"  v_cndmask_b32 v{KC}, v{KC}, v{KA}, s[{60+2*i}:{61+2*i}]")
    a(f"  ds_write_b32 v108, v{KC}")
    a("  s_add_u32 s30, s30, 1")
    a("  s_and_b32 s31, s30, 3")
    a("  s_cbranch_scc1 L_k_next")
    a("  s_mov_b64 exec, 1")
    a(f"  ds_add_u32 v112, v113 offset:{FL+F_K}")
    a("  s_mov_b64 exec, -1")
    a("  s_waitcnt lgkmcnt(0)")
    a("  v_add_u32 v112, 4, v112")
    a("L_k_next:")
    a("  s_waitcnt lgkmcnt(0)")
    a("  v_add_u32 v108, 32, v108")
    a("  s_cmp_lt_u32 s30, 16")
    a("  s_cbranch_scc1 L_k")
    stamp(5)
    a("  s_mov_b32 s30, 0")
    a("  v_mov_b32 v112, 0")
    lds_wait(13, FL+F_P, 1, 3, extra=lambda: a(f"  ds_read_b128 v[{PA}:{PA+3}], v109"))
    def crossV():
        a("  s_and_b32 s31, s30, 3")
        a("  s_cmp_eq_u32 s31, 3")
        a(f"  s_cselect_b32 s31, {BIG}, s77")
        a("  s_add_u32 s28, s28, s31")
    def vstep(k):
        t = k % 3; i = k // 3; r = RING + 4*(k % R)
        if t == 0:
            if i in (0, 4): a("  s_waitcnt lgkmcnt(0)")
            p = (PA if i < 4 else PB) + (i & 3)
            for e in range(4): a(f"  v_and_b32 v{AOP+e}, v{p}, v{VM+e}")
            if i == 0: a(f"  ds_read_b128 v[{PB}:{PB+3}], v109 offset:16")
            if i == 4: a(f"  ds_read_b128 v[{PA}:{PA+3}], v109 offset:32")
        c = f"v[{ACC+4*t}:{ACC+4*t+3}]"
        a(f"  v_mfma_f32_16x16x32_bf16 {c}, v[{AOP}:{AOP+3}], v[{r}:{r+3}], {c}")
    def vflush():
        a("  s_mov_b64 exec, s[34:35]")
        for t in range(3): a(f"  ds_write_b128 v111, v[{ACC+4*t}:{ACC+4*t+3}] offset:{256*t}")
        a("  s_mov_b64 exec, 1")
        a(f"  ds_add_u32 v112, v113 offset:{FL+F_V}")
        a("  s_mov_b64 exec, -1")
    a("L_v:")
    a("  s_and_b32 s31, s30, 3")
    a("  s_cbranch_scc1 L_v_body")
    a("  s_lshr_b32 s31, s30, 2")
    a("  s_add_u32 s31, s31, 2")
    a("  s_min_u32 s31, s31, 4")
    lds_wait(13, FL+F_P, "s31", 3)
    for k in range(12): a(f"  v_mov_b32 v{ACC+k}, 0")
    a("L_v_body:")
    for k in range(24):
        pace(N)
        issue(k + LEAD, crossV)
        vstep(k)
    a("  v_add_u32 v109, 32, v109")
    a("  s_add_u32 s30, s30, 1")
    a("  s_and_b32 s31, s30, 3")
    a("  s_cbranch_scc1 L_v_next")
    vflush()
    a("  s_waitcnt lgkmcnt(0)")
    a("  v_add_u32 v112, 4, v112")
    a("  v_add_u32 v111, 6144, v111")
    a("L_v_next:")
    a("  s_cmp_lt_u32 s30, 15")
    a("  s_cbranch_scc1 L_v")
    for k in range(24):
        if k + LEAD < 24:
            pace(N2)
            issue(k + LEAD, lambda: None)
        else:
            a(f"  s_waitcnt vmcnt({23-k})")
        vstep(k)
    stamp(6)
    vflush()
    a("  s_waitcnt lgkmcnt(0)")
    stamp(7)
    stamp_flush()
    a("L_end:")
    a("  s_endpgm")
    a('.section .rodata,"a"')
    a(".p2align 6")
    a(f".amdhsa_kernel {NAME}")
    a("  .amdhsa_next_free_vgpr 168")
    a("  .amdhsa_next_free_sgpr 96")
    a("  .amdhsa_accum_offset 168")
    a("  .amdhsa_group_segment_fixed_size 0")
    a("  .amdhsa_kernarg_size 96")
    a("  .amdhsa_user_sgpr_count 2")
    a("  .amdhsa_user_sgpr_kernarg_segment_ptr 1")
    a("  .amdhsa_system_sgpr_workgroup_id_x 1")
    a("  .amdhsa_float_denorm_mode_32 3")
    a(".end_amdhsa_kernel")
    return a.fix()

if __name__ == "__main__":
    import json
    kw = json.loads(sys.argv[2]) if len(sys.argv) > 2 else {}
    open(sys.argv[1], "w").write(gen(**kw))
```

```python
import sys, struct
from asmlib import Asm

NAME = "parallel_sum__mha_block_cached__glu_gated_reglu__decode_kernel"
HEADER = open("parallel_sum__mha_block_cached__glu_gated_reglu__decode.s.ref").read().split("; Override launch")[0]

def f32(x): return "0x%08x" % struct.unpack("<I", struct.pack("<f", x))[0]

FL, QB, XN, QS, SB, OB, WB, GB, LDS_END = 0, 256, 2048, 4608, 6144, 22528, 53248, 91648, 107008
F_Q, F_P, F_G, F_K, F_V = 0, 4, 8, 16, 32
E3, E1, E4, E5, WS_END = 0x1000, 0x10000, 0x80000, 0x200000, 0x480000
STAMP = 0x500000
HEADB = 12582912
KVB = 402653184

def gen(N=5, NW=5, N2=11, LEAD=11, stamps=False, prefetch=True, pol="nt", hs="sc1", sleepg=1, bar_at=30, delay=8, sleepb=32, sleepq=4, q0pre=0, qdelay=4, dbg='', hl=None, h1=None, sleepv=1, gl=None, gl1=None, gq=None, g3=None, g5=None, xp='', pfp='', loc=True):
    if hl is None: hl = hs
    if h1 is None: h1 = hs
    a = Asm()
    R = 12
    assert N <= LEAD < R and N2 <= LEAD
    a(HEADER.rstrip("\n"))
    a("; Override launch geometry by editing the next line (default: block=256,")
    a(f"; @launch grid=(256,1,1) block=(320,1,1) lds={LDS_END}")
    a('.amdgcn_target "amdgcn-amd-amdhsa--gfx950"')
    a(".text")
    a(f".globl {NAME}")
    a(".p2align 8")
    a(f".type {NAME},@function")
    a(f"{NAME}:")
    uid = [0]
    def lab(p):
        uid[0] += 1; return f"L_{p}_{uid[0]}"
    def srd(d, p, n):
        a(f"  s_mov_b32 s{d}, s{p}"); a(f"  s_mov_b32 s{d+1}, s{p+1}")
        a(f"  s_mov_b32 s{d+2}, {n}"); a(f"  s_mov_b32 s{d+3}, 0x20000")
    PX, PK, PV, PWQ, PWO, PWG, PWU, PWD, POUT, PWS = 36, 38, 40, 42, 44, 48, 50, 52, 54, 58
    nstamp = [0]
    def stamp(idx):
        if stamps:
            a("  s_memrealtime s[78:79]"); a("  s_waitcnt lgkmcnt(0)"); a(f"  s_mov_b32 s{80+idx}, s78")
    def stamp_flush():
        if stamps:
            srd(24, PWS, 0x1000000)
            a("  s_mov_b64 exec, -1")
            a("  s_mul_i32 s76, s2, 5"); a("  s_add_u32 s76, s76, s3"); a("  s_lshl_b32 s76, s76, 6"); a(f"  s_add_u32 s76, s76, {STAMP}")
            a("  s_getreg_b32 s95, hwreg(20)")
            for g in range(4):
                for k in range(4): a(f"  v_mov_b32 v{16+4*g+k}, s{80+4*g+k}")
            a("  v_mov_b32 v15, 0")
            a("  s_mov_b64 exec, 1")
            for g in range(4): a(f"  buffer_store_dwordx4 v[{16+4*g}:{19+4*g}], v15, s[24:27], s76 offen offset:{16*g}")
            a("  s_waitcnt vmcnt(0)")

    if stamps:
        a("  s_memrealtime s[80:81]")
    a("  s_cmp_ge_u32 s2, 256")
    a("  s_cbranch_scc1 L_end")
    a("  s_load_dwordx16 s[36:51], s[0:1], 0")
    a("  s_load_dwordx8 s[52:59], s[0:1], 64")
    if stamps:
        for k in range(82, 96): a(f"  s_mov_b32 s{k}, 0")
    a("  v_lshrrev_b32 v3, 6, v0")
    a("  v_and_b32 v1, 63, v0                 ; lane")
    a("  v_readfirstlane_b32 s3, v3           ; wave")
    a("  s_and_b32 s4, s2, 7                  ; x")
    a("  s_lshr_b32 s5, s2, 3                 ; j")
    a("  v_lshrrev_b32 v9, 3, v1")
    a("  v_and_b32 v10, 7, v1")
    VM = 4
    a("  v_and_b32 v3, 1, v10")
    a("  v_lshlrev_b32 v3, 4, v3")
    a("  v_mov_b32 v8, 0xffff")
    a("  v_lshlrev_b32 v8, v3, v8")
    a("  v_lshrrev_b32 v3, 1, v10")
    for k in range(4):
        a(f"  v_cmp_eq_u32 vcc, {k}, v3")
        a(f"  v_cndmask_b32 v{VM+k}, 0, v8, vcc")
    a("  v_lshrrev_b32 v3, 5, v1")
    a("  v_mul_u32_u24 v11, 768, v3")
    a("  v_lshl_add_u32 v11, v10, 5, v11")
    a("  v_and_b32 v3, 16, v1")
    a("  v_add_u32 v11, v11, v3")
    a("  v_lshlrev_b32 v12, 4, v1             ; lane*16")
    a("  s_mov_b32 s34, 0x00ff00ff")
    a("  s_mov_b32 s35, 0xff00ff00")
    a("  s_cmp_eq_u32 s3, 0")
    a("  s_cbranch_scc0 L_stream")

    def lds_wait(vaddr, off, val, vt, extra=None, sleep=1):
        L = lab("w"); D = lab("d")
        a("  s_mov_b32 s33, 0x100000")
        a(f"{L}:")
        a(f"  ds_read_b32 v{vt}, v{vaddr} offset:{off}")
        if extra: extra()
        a("  s_waitcnt lgkmcnt(0)")
        a(f"  v_readfirstlane_b32 s32, v{vt}")
        a(f"  s_cmp_ge_u32 s32, {val}")
        a(f"  s_cbranch_scc1 {D}")
        a(f"  s_sleep {sleep}")
        a("  s_sub_u32 s33, s33, 1")
        a(f"  s_cbranch_scc0 {L}")
        a(f"{D}:")
    def dppadd(op, d, ctrl):
        a(f"  {op}_dpp v{d}, v{d}, v{d} {ctrl} row_mask:0xf bank_mask:0xf")
    def swapred(op, regs, tmp, which):
        for i, d in enumerate(regs): a(f"  v_mov_b32 v{tmp+i}, v{d}")
        for i, d in enumerate(regs): a(f"  v_permlane{which}_swap_b32 v{d}, v{tmp+i}")
        if op:
            for i, d in enumerate(regs): a(f"  {op} v{d}, v{d}, v{tmp+i}")
    def allreduce(op, regs, tmp, upto=64):
        for ctrl in ("quad_perm:[1,0,3,2]", "quad_perm:[2,3,0,1]", "row_half_mirror", "row_mirror"):
            for d in regs: dppadd(op, d, ctrl)
        swapred(op, regs, tmp, 16)
        if upto == 64: swapred(op, regs, tmp, 32)
    def parreduce(regs, tmp):
        for ctrl in ("quad_perm:[2,3,0,1]", "row_ror:4", "row_ror:8"):
            for d in regs: dppadd("v_add_f32", d, ctrl)
        swapred("v_add_f32", regs, tmp, 16)

    TAG = 6
    WQ = 16
    XF = 136
    T = 146
    a("  v_lshlrev_b32 v13, 2, v1             ; lane*4")
    a("  v_mul_u32_u24 v14, 12288, v9")
    a("  v_lshl_add_u32 v14, v10, 4, v14")
    a("  s_and_b32 s28, s5, 7")
    a("  s_mul_i32 s29, s28, 80")
    a("  s_mul_i32 s28, s29, 12288")
    a("  s_and_b32 s30, s5, 24")
    a("  s_add_u32 s30, s30, s4")
    a("  s_mul_i32 s30, s30, 384")
    a("  s_add_u32 s28, s28, s30")
    a("  s_waitcnt lgkmcnt(0)")
    a(f"  s_load_dword s{TAG}, s[{PWS}:{PWS+1}], 0")
    srd(8, PX, 1280); srd(12, PWQ, 7864320); srd(16, PWS, WS_END)
    for k in range(5): a(f"  buffer_load_dword v{T+k}, v13, s[8:11], 0 offen offset:{256*k} {xp}")
    n = 0
    for i in range(10):
        for t in range(3):
            if n == bar_at: a("  s_barrier")
            r = WQ + 12*i + 4*t
            a(f"  buffer_load_dwordx4 v[{r}:{r+3}], v14, s[12:15], s28 offen offset:{128*t} {pol}")
            n += 1
        if i < 9: a("  s_add_u32 s28, s28, 98304")
    if bar_at >= 30: a("  s_barrier")
    stamp(1)
    a(f"  s_mov_b32 s7, {f32(1/640)}")
    a("  s_waitcnt vmcnt(30)")
    for k in range(5):
        a(f"  v_lshlrev_b32 v{XF+2*k}, 16, v{T+k}")
        a(f"  v_and_b32 v{XF+2*k+1}, 0xffff0000, v{T+k}")
    S = T+5
    a(f"  v_add_f32 v{S}, v{XF}, v{XF+1}")
    for k in range(2, 10): a(f"  v_add_f32 v{S}, v{S}, v{XF+k}")
    allreduce("v_add_f32", [S], T+6)
    a(f"  v_mul_f32 v{S}, s7, v{S}             ; mean")
    Q = T+7
    a(f"  v_sub_f32 v{T}, v{XF}, v{S}")
    a(f"  v_mul_f32 v{Q}, v{T}, v{T}")
    for k in range(1, 10):
        a(f"  v_sub_f32 v{T+(k&1)}, v{XF+k}, v{S}")
        a(f"  v_fmac_f32 v{Q}, v{T+(k&1)}, v{T+(k&1)}")
    allreduce("v_add_f32", [Q], T+6)
    a(f"  v_mul_f32 v{Q}, s7, v{Q}             ; var")
    a(f"  v_cvt_pk_bf16_f32 v{T}, v{S}, v{Q}")
    a(f"  v_lshlrev_b32 v{S}, 16, v{T}         ; bf16(mean)")
    a(f"  v_and_b32 v{Q}, 0xffff0000, v{T}     ; bf16(var)")
    a(f"  v_add_f32 v{Q}, {f32(1e-5)}, v{Q}")
    a(f"  v_cvt_pk_bf16_f32 v{Q}, v{Q}, v{Q}")
    a(f"  v_lshlrev_b32 v{Q}, 16, v{Q}")
    a(f"  v_sqrt_f32 v{Q}, v{Q}")
    a(f"  v_cvt_pk_bf16_f32 v{Q}, v{Q}, v{Q}")
    a(f"  v_lshlrev_b32 v{Q}, 16, v{Q}")
    a(f"  v_rcp_f32 v{Q}, v{Q}")
    a(f"  v_lshlrev_b32 v15, 3, v1")
    for k in range(5):
        x0, x1 = XF+2*k, XF+2*k+1
        a(f"  v_sub_f32 v{x0}, v{x0}, v{S}")
        a(f"  v_sub_f32 v{x1}, v{x1}, v{S}")
        a(f"  v_cvt_pk_bf16_f32 v{x1}, v{x0}, v{x1}")
        a(f"  v_lshlrev_b32 v{x0}, 16, v{x1}")
        a(f"  v_and_b32 v{x1}, 0xffff0000, v{x1}")
        a(f"  v_mul_f32 v{x0}, v{x0}, v{Q}")
        a(f"  v_mul_f32 v{x1}, v{x1}, v{Q}")
        a(f"  v_cvt_pk_bf16_f32 v{x0}, v{x0}, v{x0}")
        a(f"  v_cvt_pk_bf16_f32 v{x1}, v{x1}, v{x1}")
        a(f"  ds_write_b64 v15, v[{x0}:{x1}] offset:{XN+512*k}")
    a(f"  v_add_u32 v15, s29, v9")
    a(f"  v_lshlrev_b32 v15, 2, v15")
    a(f"  v_add_u32 v15, {XN}, v15")
    a("  s_waitcnt lgkmcnt(0)")
    a(f"  s_add_u32 s{TAG}, s{TAG}, 0x9e3779b0")
    a(f"  s_and_b32 s{TAG}, s{TAG}, 0xfffffff0")
    a("  s_getreg_b32 s20, hwreg(20, 0, 4)")
    a(f"  s_or_b32 s20, s20, s{TAG}")
    for k in range(5): a(f"  ds_read2_b32 v[{XF+2*k}:{XF+2*k+1}], v15 offset0:{16*k} offset1:{16*k+8}")
    AC = T+2
    AO = T+14
    a("  s_waitcnt lgkmcnt(0)")
    stamp(2)
    for i in range(10):
        ao = AO + 4*(i & 1)
        for k in range(4): a(f"  v_and_b32 v{ao+k}, v{XF+i}, v{VM+k}")
        a(f"  s_waitcnt vmcnt({27-3*i})")
        for t in range(3):
            r = WQ + 12*i + 4*t
            c = f"v[{AC+4*t}:{AC+4*t+3}]"
            a(f"  v_mfma_f32_16x16x32_bf16 {c}, v[{ao}:{ao+3}], v[{r}:{r+3}], {c if i else 0}")
    a("  v_mul_u32_u24 v14, 12, v1            ; lane*12")
    a("  s_lshl_b32 s28, s4, 5")
    a("  s_add_u32 s28, s28, s5")
    a("  s_lshl_b32 s31, s28, 10")
    a(f"  s_add_u32 s30, s31, {E1}")
    a("  s_mov_b64 exec, s[34:35]")
    for t in range(3): a(f"  ds_write_b128 v11, v[{AC+4*t}:{AC+4*t+3}] offset:{QS+256*t}")
    a("  s_mov_b64 exec, -1")
    G = 16
    for k in range(3): a(f"  ds_read_b32 v{G+k}, v14 offset:{QS+4*k}")
    for k in range(3): a(f"  ds_read_b32 v{G+4+k}, v14 offset:{QS+768+4*k}")
    a(f"  v_mov_b32 v{G+3}, s20")
    a("  s_waitcnt lgkmcnt(0)")
    for k in range(3): a(f"  v_add_f32 v{G+k}, v{G+k}, v{G+4+k}")
    a(f"  buffer_store_dwordx4 v[{G}:{G+3}], v12, s[16:19], s30 offen {h1}")
    stamp(3)

    def lstore(txt):
        if not loc:
            a(f"  {txt} {hl}"); return
        X = lab("sx"); Y = lab("sy")
        a("  s_cmp_eq_u32 s0, 0")
        a(f"  s_cbranch_scc1 {X}")
        a(f"  {txt} sc1")
        a(f"  s_branch {Y}")
        a(f"{X}:")
        a(f"  {txt}")
        a(f"{Y}:")
    def progress_delay(n):
        a(f"  ds_read_b32 v3, v13 offset:{FL+F_G}")
        a("  s_waitcnt lgkmcnt(0)")
        a("  v_readfirstlane_b32 s77, v3")
        a(f"  s_add_u32 s77, s77, {n}")
        a("  s_min_u32 s77, s77, 120")
        lds_wait(13, FL+F_G, "s77", 3, sleep=8)
    def gather(nl, voff, soffs, dst, sleep=None, tail=False, lp=None, first=None, xid=False):
        L = lab("g"); D = lab("gd")
        a("  s_mov_b32 s33, 0x10000")
        if lp is None: lp = hs
        if first is not None:
            C = lab("gc")
            for i in range(nl):
                s, imm = soffs[i]
                a(f"  buffer_load_dwordx4 v[{dst+4*i}:{dst+4*i+3}], v{voff}, s[16:19], {s} offen offset:{imm} {first}")
            a(f"  s_branch {C}")
        a(f"{L}:")
        for i in range(nl):
            s, imm = soffs[i]
            a(f"  buffer_load_dwordx4 v[{dst+4*i}:{dst+4*i+3}], v{voff}, s[16:19], {s} offen offset:{imm} {lp}")
        if first is not None: a(f"{C}:")
        if nl == 1:
            a("  s_waitcnt vmcnt(0)")
            a(f"  v_cmp_ne_u32 vcc, s{TAG}, v{dst+3}")
        else:
            for i in range(nl):
                a(f"  s_waitcnt vmcnt({nl-1-i})")
                tg = "s20" if xid else f"s{TAG}"
                if i == 0: a(f"  v_xor_b32 v3, {tg}, v{dst+3}")
                else:
                    a(f"  v_xor_b32 v2, {tg}, v{dst+4*i+3}")
                    a(f"  v_or_b32 v3, v3, v2")
            a("  v_cmp_lt_u32 vcc, 15, v3" if xid else "  v_cmp_ne_u32 vcc, 0, v3")
        a("  s_and_b64 exec, exec, vcc")
        a(f"  s_cbranch_scc0 {D}")
        if tail:
            S = lab("gs")
            if sleepg: a(f"  s_sleep {sleepg}")
            a("  s_cmp_eq_u32 s30, 4")
            a(f"  s_cbranch_scc1 {S}")
            a(f"  s_sleep {sleepb}")
            a(f"{S}:")
        else:
            a(f"  s_sleep {sleep}")
        a("  s_sub_u32 s33, s33, 1")
        a(f"  s_cbranch_scc0 {L}")
        a(f"{D}:")
        a("  s_mov_b64 exec, -1")

    G = 32
    a("  s_lshl_b32 s28, s4, 15")
    a(f"  s_add_u32 s28, s28, {E1}")
    a("  v_mul_u32_u24 v15, 6, v1")
    a("  v_mov_b32 v13, 0")
    a("  s_mov_b32 s30, 0")
    a("  s_mov_b32 s0, 0")
    if q0pre: a(f"  s_sleep {q0pre}")
    a("L_hq:")
    a("  s_add_u32 s29, s28, 4096")
    gather(8, 12, [("s28", 1024*i) for i in range(4)] + [("s29", 1024*i) for i in range(4)], G, sleep=sleepq, lp=gq, xid=True)
    a("  v_readfirstlane_b32 s29, v3")
    a("  s_or_b32 s0, s0, s29")
    for i in range(1, 8):
        for k in range(3): a(f"  v_add_f32 v{G+k}, v{G+k}, v{G+4*i+k}")
    a(f"  v_cvt_pk_bf16_f32 v{G}, v{G}, v{G+1}")
    a(f"  v_cvt_pk_bf16_f32 v{G+2}, v{G+2}, v{G+2}")
    a("  s_add_u32 s30, s30, 1")
    a("  v_mov_b32 v3, s30")
    a(f"  ds_write_b16 v15, v{G} offset:{QB}")
    a(f"  ds_write_b16_d16_hi v15, v{G} offset:{QB+2}")
    a(f"  ds_write_b16 v15, v{G+2} offset:{QB+4}")
    a(f"  ds_write_b32 v13, v3 offset:{FL+F_Q}")
    if stamps:
        a("  s_cmp_eq_u32 s30, 1"); a("  s_cbranch_scc0 L_nst4"); stamp(4); a("L_nst4:")
    if qdelay:
        a("  s_cmp_eq_u32 s30, 1"); a("  s_cbranch_scc0 L_hq_nd")
        lds_wait(13, FL+F_G, qdelay, 3, sleep=8)
        a("L_hq_nd:")
    a("  v_add_u32 v15, 384, v15")
    a("  s_add_u32 s28, s28, 8192")
    a("  s_cmp_lt_u32 s30, 4")
    a("  s_waitcnt lgkmcnt(0)")
    a("  s_cbranch_scc1 L_hq")
    stamp(5)

    if 'noH' in dbg:
        a("  v_mov_b32 v3, 4")
        a(f"  ds_write_b32 v13, v3 offset:{FL+F_P}")
        a("  s_waitcnt lgkmcnt(0)")
        stamp_flush()
        a("  s_endpgm")
    SC = 16
    a("  v_lshlrev_b32 v15, 9, v9")
    a("  v_lshl_add_u32 v15, v10, 4, v15")
    a(f"  v_add_u32 v15, {SB}, v15")
    a("  v_and_b32 v2, 31, v1")
    a("  v_lshlrev_b32 v48, 4, v2             ; (lane&31)*16")
    a("  s_lshl_b32 s28, s4, 9")
    a(f"  s_add_u32 s28, s28, {E3}            ; E3 + x*512")
    a("  s_lshl_b32 s29, s5, 4")
    a("  v_mov_b32 v49, s29                   ; j*16")
    a(f"  s_mov_b32 s7, {f32(192**-0.5)}")
    a(f"  s_mov_b32 s21, {f32(1.4426950408889634)}")
    a("  s_mov_b32 s30, 0")
    a("  v_mov_b32 v50, 0                     ; 4*round")
    a("L_hk:")
    lds_wait(50, FL+F_K, 4, 3, sleep=8)
    for i in range(4): a(f"  ds_read_b128 v[{SC+4*i}:{SC+4*i+3}], v15 offset:{4096*i}")
    a("  s_waitcnt lgkmcnt(0)")
    for k in range(8):
        x0, x1 = SC+2*k, SC+2*k+1
        a(f"  v_cvt_pk_bf16_f32 v{x1}, v{x0}, v{x1}")
        a(f"  v_lshlrev_b32 v{x0}, 16, v{x1}")
        a(f"  v_and_b32 v{x1}, 0xffff0000, v{x1}")
        a(f"  v_mul_f32 v{x0}, s7, v{x0}")
        a(f"  v_mul_f32 v{x1}, s7, v{x1}")
        a(f"  v_cvt_pk_bf16_f32 v{x1}, v{x0}, v{x1}")
        a(f"  v_lshlrev_b32 v{x0}, 16, v{x1}")
        a(f"  v_and_b32 v{x1}, 0xffff0000, v{x1}")
    M = 52; Ls = 53
    a(f"  v_max_f32 v{M}, v{SC}, v{SC+1}")
    for k in range(1, 8): a(f"  v_max3_f32 v{M}, v{M}, v{SC+2*k}, v{SC+2*k+1}")
    allreduce("v_max_f32", [M], 56)
    for k in range(16):
        a(f"  v_sub_f32 v{32+k}, v{SC+k}, v{M}")
        a(f"  v_mul_f32 v{32+k}, s21, v{32+k}")
        a(f"  v_exp_f32 v{32+k}, v{32+k}")
    a(f"  v_add_f32 v{Ls}, v32, v33")
    for k in range(2, 16): a(f"  v_add_f32 v{Ls}, v{Ls}, v{32+k}")
    allreduce("v_add_f32", [Ls], 56)
    a(f"  v_mov_b32 v54, 0")
    a(f"  v_mov_b32 v55, s{TAG}")
    a("  s_mov_b64 exec, 1")
    lstore("buffer_store_dwordx4 v[52:55], v49, s[16:19], s28 offen")
    a("  s_mov_b64 exec, -1")
    if delay: progress_delay(delay)
    gather(1, 48, [("s28", 0)], 60, sleep=sleepb, lp=g3)
    a("  v_mov_b32 v64, v60")
    allreduce("v_max_f32", [64], 56, upto=32)
    a("  v_sub_f32 v60, v60, v64")
    a("  v_mul_f32 v60, s21, v60")
    a("  v_exp_f32 v60, v60")
    a("  v_mul_f32 v61, v61, v60")
    allreduce("v_add_f32", [61], 56, upto=32)
    a("  v_rcp_f32 v62, v61")
    a("  v_fma_f32 v63, -v61, v62, 1.0")
    a("  v_fma_f32 v62, v63, v62, v62            ; refined 1/L")
    for k in range(16):
        a(f"  v_sub_f32 v{32+k}, v{SC+k}, v64")
        a(f"  v_mul_f32 v{32+k}, s21, v{32+k}")
        a(f"  v_exp_f32 v{32+k}, v{32+k}")
    for k in range(16):
        a(f"  v_mul_f32 v{32+k}, v{32+k}, v62")
        a(f"  v_cvt_pk_bf16_f32 v{32+k}, v{32+k}, v{32+k}")
    a("  s_add_u32 s30, s30, 1")
    a("  v_mov_b32 v3, s30")
    for i in range(4): a(f"  ds_write_b128 v15, v[{32+4*i}:{35+4*i}] offset:{4096*i}")
    a(f"  ds_write_b32 v13, v3 offset:{FL+F_P}")
    a("  s_waitcnt lgkmcnt(0)")
    a("  v_add_u32 v15, 128, v15")
    a("  v_add_u32 v50, 4, v50")
    a("  s_add_u32 s28, s28, 4096")
    a("  s_cmp_lt_u32 s30, 4")
    a("  s_cbranch_scc1 L_hk")
    stamp(6)

    if 'noC' in dbg:
        stamp_flush()
        a("  s_endpgm")
    a("  s_and_b32 s28, s5, 15")
    a("  s_mul_i32 s28, s28, 40")
    a("  v_add_u32 v15, s28, v9")
    a("  v_lshlrev_b32 v15, 2, v15")
    a(f"  v_add_u32 v15, {XN}, v15")
    for k in range(5): a(f"  ds_read_b32 v{XF+k}, v15 offset:{32*k}")
    a(f"  v_add_u32 v15, {GB}, v12")
    for q in range(15): a(f"  ds_read_b128 v[{16+4*q}:{19+4*q}], v15 offset:{1024*q}")
    a("  s_waitcnt lgkmcnt(0)")
    for i in range(5):
        ao = AO + 4*(i & 1)
        for k in range(4): a(f"  v_and_b32 v{ao+k}, v{XF+i}, v{VM+k}")
        for t in range(3):
            r = 16 + 12*i + 4*t
            cb = 80 + 12*(i & 3) + 4*t
            c = f"v[{cb}:{cb+3}]"
            a(f"  v_mfma_f32_16x16x32_bf16 {c}, v[{ao}:{ao+3}], v[{r}:{r+3}], {c if i == 4 else 0}")
    a("  s_mov_b64 exec, s[34:35]")
    for i in (1, 2, 3, 0):
        for t in range(3):
            cb = 80 + 12*i + 4*t
            a(f"  ds_write_b128 v11, v[{cb}:{cb+3}] offset:{OB+1536*i+256*t}")
    a("  s_mov_b64 exec, -1")

    Y = 136
    WR = 16
    WP = 46
    a(f"  v_add_u32 v14, {OB}, v14")
    a("  v_lshlrev_b32 v15, 2, v1")
    a(f"  v_add_u32 v15, {WB}, v15")
    a("  v_lshrrev_b32 v2, 1, v1")
    a("  v_and_b32 v3, 1, v1")
    a("  v_lshlrev_b32 v146, 10, v2")
    a("  v_lshl_add_u32 v146, v3, 4, v146")
    a("  v_mul_u32_u24 v147, 5120, v2")
    a("  v_lshl_add_u32 v147, v3, 4, v147")
    a("  s_lshl_b32 s22, s2, 3")
    a("  v_lshl_add_u32 v148, v3, 2, s22")
    a(f"  buffer_load_dword v149, v148, s[8:11], 0 offen {xp}")
    srd(12, POUT, 1280)
    a(f"  s_add_u32 s31, s31, {E4}")
    a("  s_lshl_b32 s28, s4, 15")
    a("  s_lshl_b32 s29, s5, 5")
    a("  s_add_u32 s28, s28, s29")
    a(f"  s_add_u32 s28, s28, {E4}")
    a("  s_mul_i32 s23, s2, 5120")
    a(f"  s_add_u32 s23, s23, {E5}")
    a("  s_lshl_b32 s22, s2, 5")
    a(f"  s_add_u32 s22, s22, {E5}")
    a("  s_mov_b32 s20, 0x05040100")
    a("  s_mov_b32 s21, 0x07060302")
    a("  s_mov_b32 s30, 0")
    a("  v_mov_b32 v150, 0                    ; 4*it")
    for k in range(10): a(f"  v_mov_b32 v{Y+k}, 0")
    a("L_hc:")
    for q in range(15): a(f"  ds_read2st64_b32 v[{WR+2*q}:{WR+2*q+1}], v15 offset0:{2*q} offset1:{2*q+1}")
    a("  s_waitcnt lgkmcnt(0)")
    pairs = [(0, 1), (3, 4), (2, 5)]
    for pi, (ra, rb) in enumerate(pairs):
        for k in range(5):
            a(f"  v_perm_b32 v{WP+10*pi+2*k}, v{WR+5*rb+k}, v{WR+5*ra+k}, s20")
            a(f"  v_perm_b32 v{WP+10*pi+2*k+1}, v{WR+5*rb+k}, v{WR+5*ra+k}, s21")
    a("  s_cmp_eq_u32 s30, 0")
    a("  s_cbranch_scc1 L_hc_go")
    lds_wait(150, FL+F_V-4, 4, 3, sleep=sleepv)
    a("L_hc_go:")
    if stamps:
        a("  s_cmp_eq_u32 s30, 4"); a("  s_cbranch_scc0 L_nst7"); stamp(7); a("L_nst7:")
    O = 80
    for k in range(3):
        if k: a(f"  v_add_u32 v{2+(k&1)}, {4*k}, v14")
        va = 14 if k == 0 else 2+(k&1)
        for p in range(4): a(f"  ds_read2st64_b32 v[{O+8*k+2*p}:{O+8*k+2*p+1}], v{va} offset0:{6*p} offset1:{6*p+3}")
    a(f"  v_mov_b32 v107, s{TAG}")
    for k in range(3):
        a(f"  s_waitcnt lgkmcnt({8-4*k})")
        b = O+8*k
        a(f"  v_pk_add_f32 v[{b}:{b+1}], v[{b}:{b+1}], v[{b+2}:{b+3}]")
        a(f"  v_pk_add_f32 v[{b+4}:{b+5}], v[{b+4}:{b+5}], v[{b+6}:{b+7}]")
        a(f"  v_pk_add_f32 v[{b}:{b+1}], v[{b}:{b+1}], v[{b+4}:{b+5}]")
        a(f"  v_add_f32 v{104+k}, v{b}, v{b+1}")
    if 'noS4' in dbg:
        a("  s_cmp_lg_u32 s30, 4")
        a("  s_cbranch_scc1 L_hc_next")
    if 'noT' in dbg:
        a("  s_cmp_eq_u32 s30, 4")
        a("  s_cbranch_scc1 L_hc_next")
    lstore("buffer_store_dwordx4 v[104:107], v12, s[16:19], s31 offen")
    if 'noG4' in dbg:
        a("  s_cmp_lg_u32 s30, 4")
        a("  s_cbranch_scc1 L_hc_next")
    if delay:
        a("  s_cmp_eq_u32 s30, 4"); a("  s_cbranch_scc1 L_hc_nd1")
        progress_delay(delay)
        a("L_hc_nd1:")
    gather(1, 146, [("s28", 0)], 108, tail=True, lp=gl, first=gl1)
    if stamps:
        a("  s_cmp_eq_u32 s30, 4"); a("  s_cbranch_scc0 L_nst8"); stamp(8); a("L_nst8:")
    parreduce([108, 109, 110], 112)
    swapred(None, [108, 109, 110], 112, 32)
    a("  s_cmp_eq_u32 s30, 0")
    a("  s_cbranch_scc1 L_hc_ffn")
    for k in range(3): a(f"  v_add_f32 v{108+k}, v{108+k}, v{112+k}")
    a("L_hc_pack:")
    a("  v_cvt_pk_bf16_f32 v108, v108, v109")
    a("  v_cvt_pk_bf16_f32 v110, v110, v110")
    a("  v_readlane_b32 s24, v108, 0")
    a("  v_readlane_b32 s25, v108, 1")
    a("  v_readlane_b32 s26, v110, 0")
    a("  v_readlane_b32 s27, v110, 1")
    for k in range(10): a(f"  v_dot2c_f32_bf16 v{Y+k}, s24, v{WP+k}")
    a("  s_pack_ll_b32_b16 s26, s26, s27")
    for k in range(10): a(f"  v_dot2c_f32_bf16 v{Y+k}, s25, v{WP+10+k}")
    for k in range(10): a(f"  v_dot2c_f32_bf16 v{Y+k}, s26, v{WP+20+k}")
    if 'noE5f' in dbg:
        a("  s_cmp_lg_u32 s30, 4")
    else:
        a("  s_and_b32 s29, s30, 3")
    a("  s_cbranch_scc1 L_hc_next")
    for k in range(5):
        b = 80 + 4*k
        a(f"  v_mov_b32 v{b}, v{Y+2*k}"); a(f"  v_mov_b32 v{b+1}, v{Y+2*k+1}")
        a(f"  v_mov_b32 v{b+2}, s{TAG}"); a(f"  v_mov_b32 v{b+3}, s{TAG}")
        if k == 4: a("  s_add_u32 s29, s23, 4096")
        a(f"  buffer_store_dwordx4 v[{b}:{b+3}], v12, s[16:19], {'s23' if k < 4 else 's29'} offen offset:{1024*(k&3)} {hs}")
    if stamps:
        a("  s_cmp_eq_u32 s30, 4"); a("  s_cbranch_scc0 L_nst9"); stamp(9); a("L_nst9:")
    a("  s_cmp_ge_u32 s2, 160")
    a("  s_cbranch_scc1 L_hc_fin")
    if 'noG5f' in dbg:
        a("  s_cmp_lg_u32 s30, 4")
        a("  s_cbranch_scc1 L_hc_fin")
    for i in range(8): a(f"  s_add_u32 s{60+i}, s22, {163840*i}")
    G = 100
    if delay:
        a("  s_cmp_eq_u32 s30, 4"); a("  s_cbranch_scc1 L_hc_nd2")
        progress_delay(delay)
        a("L_hc_nd2:")
    gather(8, 147, [(f"s{60+i}", 0) for i in range(8)], G, tail=True, lp=g5)
    for st in (4, 2, 1):
        for i in range(st): a(f"  v_pk_add_f32 v[{G+4*i}:{G+4*i+1}], v[{G+4*i}:{G+4*i+1}], v[{G+4*(i+st)}:{G+4*(i+st)+1}]")
    parreduce([G, G+1], G+4)
    swapred("v_add_f32", [G, G+1], G+4, 32)
    a(f"  v_cvt_pk_bf16_f32 v{G}, v{G}, v{G+1}")
    a(f"  v_lshlrev_b32 v{G+1}, 16, v{G}")
    a(f"  v_and_b32 v{G+2}, 0xffff0000, v{G}")
    a(f"  v_lshlrev_b32 v{G+3}, 16, v149")
    a(f"  v_and_b32 v{G+4}, 0xffff0000, v149")
    a(f"  v_add_f32 v{G+1}, v{G+1}, v{G+3}")
    a(f"  v_add_f32 v{G+2}, v{G+2}, v{G+4}")
    a(f"  v_cvt_pk_bf16_f32 v{G+2}, v{G+1}, v{G+2}")
    a(f"  v_lshlrev_b32 v{G+1}, 16, v{G+2}")
    a(f"  v_and_b32 v{G+2}, 0xffff0000, v{G+2}")
    a(f"  v_lshlrev_b32 v{G+3}, 16, v151")
    a(f"  v_and_b32 v{G+4}, 0xffff0000, v151")
    a(f"  v_add_f32 v{G+1}, v{G+1}, v{G+3}")
    a(f"  v_add_f32 v{G+2}, v{G+2}, v{G+4}")
    a(f"  v_cvt_pk_bf16_f32 v{G+1}, v{G+1}, v{G+2}")
    a(f"  v_mov_b32 v151, v{G}")
    a("  s_cmp_eq_u32 s30, 0")
    a("  s_cbranch_scc1 L_hc_fin")
    a("  s_mov_b64 exec, 3")
    a(f"  buffer_store_dword v{G+1}, v148, s[12:15], 0 offen")
    a("  s_cmp_eq_u32 s2, 0")
    a("  s_cbranch_scc0 L_hc_fin")
    a("  s_mov_b64 exec, 1")
    a(f"  v_mov_b32 v107, s{TAG}")
    a(f"  buffer_store_dword v107, v13, s[16:19], 0 offen")
    a("L_hc_fin:")
    a("  s_mov_b64 exec, -1")
    for k in range(10): a(f"  v_mov_b32 v{Y+k}, 0")
    a(f"  s_add_u32 s23, s23, {256*5120}")
    a(f"  s_add_u32 s22, s22, {256*5120}")
    a("L_hc_next:")
    a("  v_add_u32 v14, 6144, v14")
    a("  v_add_u32 v15, 7680, v15")
    a("  v_add_u32 v150, 4, v150")
    a("  s_add_u32 s31, s31, 0x40000")
    a("  s_add_u32 s28, s28, 0x40000")
    a("  s_add_u32 s30, s30, 1")
    a("  s_cmp_lt_u32 s30, 5")
    a("  s_cbranch_scc1 L_hc")
    stamp(10)
    stamp_flush()
    a("  s_endpgm")
    a("L_hc_ffn:")
    for k in range(3):
        a(f"  v_cvt_pk_bf16_f32 v{112+k}, v{108+k}, v{112+k}")
        a(f"  v_lshlrev_b32 v{108+k}, 16, v{112+k}")
        a(f"  v_and_b32 v{112+k}, 0xffff0000, v{112+k}")
        a(f"  v_cmp_lt_f32 vcc, 0, v{108+k}")
        a(f"  v_cndmask_b32 v116, 0, 1.0, vcc")
        a(f"  v_mul_f32 v{108+k}, v{108+k}, v116")
        a(f"  v_mul_f32 v{108+k}, v{108+k}, v{112+k}")
    a("  s_branch L_hc_pack")

    a(".p2align 6")
    a("L_stream:")
    RING = 16; QF = 64; KA = 76; KC = 77
    AOP = 84; PA = 88; PB = 92; ACC = 96
    a("  s_setprio 1")
    a("  s_sub_u32 s6, s3, 1                  ; w")
    a("  v_mov_b32 v13, 0")
    a("  v_lshlrev_b32 v3, 2, v1")
    a(f"  ds_write_b32 v3, v13 offset:{FL}")
    if prefetch:
        a("  s_cmp_eq_u32 s6, 0")
        a("  s_cbranch_scc0 L_nopf")
        a("  s_getpc_b64 s[24:25]")
        a("L_pc:")
        a(f"  s_sub_u32 s24, s24, L_pc-{NAME}")
        a("  s_subb_u32 s25, s25, 0")
        a("  v_lshlrev_b32 v3, 7, v1")
        a(f"  v_min_u32 v3, L_end-{NAME}, v3")
        a(f"  global_load_dword v14, v3, s[24:25] {pfp}")
        a("L_nopf:")
    a("  v_mul_u32_u24 v2, 384, v9")
    a("  v_lshl_add_u32 v2, v10, 4, v2")
    a("  v_mul_u32_u24 v15, 3072, v9")
    a("  v_lshl_add_u32 v15, v10, 4, v15")
    a("  s_lshl_b32 s7, s6, 12")
    a("  v_lshl_add_u32 v109, v9, 9, s7")
    a(f"  v_add_u32 v109, {SB}, v109")
    a("  v_lshl_add_u32 v108, v10, 2, v109")
    a("  v_lshlrev_b32 v110, 4, v10")
    a("  s_mul_i32 s7, s6, 1536")
    a(f"  s_add_u32 s7, s7, {OB+6144}")
    a("  v_add_u32 v111, s7, v11")
    a("  v_mov_b32 v112, 0                    ; 4*round")
    a("  v_mov_b32 v113, 1")
    for s in range(8):
        a(f"  s_mov_b32 s{60+2*s}, {hex(0x01010101 << s)}")
        a(f"  s_mov_b32 s{61+2*s}, {hex(0x01010101 << s)}")
    a(f"  s_mul_i32 s29, s4, {HEADB}")
    a("  s_lshl_b32 s7, s5, 2")
    a("  s_add_u32 s7, s7, s6")
    a("  s_mul_i32 s7, s7, 3072")
    a("  s_add_u32 s29, s29, s7")
    a("  s_mov_b32 s28, s29")
    a("  s_waitcnt lgkmcnt(0)")
    srd(8, PK, KVB)
    srd(12, PWO, 7864320); srd(16, PWD, 1966080)
    a("  s_cmp_lt_u32 s5, 16")
    a(f"  s_cselect_b32 s20, s{PWG}, s{PWU}")
    a(f"  s_cselect_b32 s21, s{PWG+1}, s{PWU+1}")
    a("  s_mov_b32 s22, 1966080"); a("  s_mov_b32 s23, 0x20000")
    a("  s_lshl_b32 s24, s6, 3"); a("  s_add_u32 s24, s24, s4"); a("  s_mul_i32 s24, s24, 192")
    a("  s_mul_i32 s25, s5, 6"); a("  s_add_u32 s24, s24, s25"); a("  s_mul_i32 s24, s24, 1280")
    a("  s_mul_i32 s26, s4, 192"); a("  s_add_u32 s26, s26, s25"); a("  s_mul_i32 s26, s26, 1280")
    a("  s_lshl_b32 s7, s6, 11"); a("  s_add_u32 s26, s26, s7")
    a("  s_and_b32 s27, s5, 15"); a("  s_mul_i32 s27, s27, 122880"); a("  s_mul_i32 s25, s4, 384"); a("  s_add_u32 s27, s27, s25")
    a("  s_barrier")
    stamp(1)
    def pace(n): a(f"  s_waitcnt vmcnt({n-1})")
    a("  s_mul_i32 s25, s6, 24576"); a("  s_add_u32 s25, s25, s27")
    a("  s_mul_i32 s31, s6, 3072"); a(f"  s_add_u32 s31, s31, {GB}")
    for t in range(3):
        a("  s_mov_b32 m0, s31")
        pace(NW)
        a(f"  buffer_load_dwordx4 v15, s[20:23], s25 offen {pol} lds")
        a("  s_add_u32 s25, s25, 128"); a("  s_add_u32 s31, s31, 1024")
    a("  s_cmp_eq_u32 s6, 3")
    a("  s_cbranch_scc1 L_nogu")
    a("  s_lshl_b32 s25, s6, 7"); a("  s_add_u32 s25, s25, s27"); a("  s_add_u32 s25, s25, 98304")
    a("  s_lshl_b32 s31, s6, 10"); a(f"  s_add_u32 s31, s31, {GB+12288}")
    a("  s_mov_b32 m0, s31")
    pace(NW)
    a(f"  buffer_load_dwordx4 v15, s[20:23], s25 offen {pol} lds")
    a("L_nogu:")
    a(f"  s_add_u32 s31, s7, {WB}")
    a("  s_mov_b32 m0, s31")
    pace(NW)
    a(f"  buffer_load_dwordx4 v12, s[16:19], s26 offen {pol} lds")
    a("  s_cmp_eq_u32 s6, 3")
    a("  s_cselect_b32 exec_hi, 0, -1")
    pace(NW)
    a(f"  buffer_load_dwordx4 v12, s[16:19], s26 offen offset:1024 {pol} lds")
    a("  s_mov_b64 exec, -1")
    a("  s_mul_i32 s31, s6, 7680"); a(f"  s_add_u32 s31, s31, {WB+7680}")
    a("  s_mov_b32 m0, s31")
    for n in range(8):
        if n == 4:
            a("  s_add_u32 s24, s24, 4096"); a("  s_add_u32 s31, s31, 4096"); a("  s_mov_b32 m0, s31")
        if n == 7: a("  s_mov_b32 exec_hi, 0")
        pace(NW)
        a(f"  buffer_load_dwordx4 v12, s[12:15], s24 offen offset:{1024*(n&3)} {pol} lds")
    a("  s_mov_b64 exec, -1")
    stamp(2)

    SMALL = 393216; BIG = SMALL + 7*HEADB
    def issue(k, cross):
        t = k % 3; r = RING + 4*(k % R)
        a(f"  buffer_load_dwordx4 v[{r}:{r+3}], v2, s[8:11], s28 offen offset:{128*t} {pol}")
        if t == 2:
            if (k // 3) % 8 == 7: cross()
            else: a(f"  s_add_u32 s28, s28, {SMALL}")
    for k in range(LEAD):
        pace(N)
        issue(k, None)
    stamp(3)
    a("  s_mov_b32 s30, 0")
    a("L_k:")
    a("  s_and_b32 s31, s30, 3")
    a("  s_cbranch_scc1 L_k_body")
    a("  s_lshr_b32 s31, s30, 2")
    a("  s_add_u32 s31, s31, 1")
    def rq():
        for t in range(3): a(f"  ds_read_b128 v[{QF+4*t}:{QF+4*t+3}], v110 offset:{QB+128*t}")
    lds_wait(13, FL+F_Q, "s31", 3, extra=rq)
    a("  v_add_u32 v110, 384, v110")
    if stamps:
        a("  s_cmp_eq_u32 s30, 0"); a("  s_cbranch_scc0 L_k_body"); stamp(4)
    a("L_k_body:")
    def crossK():
        a("  s_and_b32 s31, s30, 3")
        a("  s_cmp_eq_u32 s31, 3")
        a(f"  s_cselect_b32 s31, {BIG}, s77")
        a("  s_add_u32 s28, s28, s31")
        a("  s_cmp_eq_u32 s30, 15")
        a("  s_cselect_b32 s28, s29, s28")
        a(f"  s_cselect_b32 s8, s{PV}, s8")
        a(f"  s_cselect_b32 s9, s{PV+1}, s9")
    a(f"  s_mov_b32 s77, {SMALL}")
    for k in range(24):
        t = k % 3; i = k // 3; r = RING + 4*(k % R)
        pace(N)
        issue(k + LEAD, crossK)
        if t == 0: a(f"  v_mov_b32 v{KA}, 0")
        for e in range(4): a(f"  v_dot2c_f32_bf16 v{KA}, v{r+e}, v{QF+4*t+e}")
        if t == 2:
            dppadd("v_add_f32", KA, "quad_perm:[1,0,3,2]")
            dppadd("v_add_f32", KA, "quad_perm:[2,3,0,1]")
            dppadd("v_add_f32", KA, "row_half_mirror")
            a(f"  v_cndmask_b32 v{KC}, v{KC}, v{KA}, s[{60+2*i}:{61+2*i}]")
    a(f"  ds_write_b32 v108, v{KC}")
    a("  s_mov_b64 exec, 1")
    a(f"  ds_add_u32 v13, v113 offset:{FL+F_G}")
    a("  s_add_u32 s30, s30, 1")
    a("  s_and_b32 s31, s30, 3")
    a("  s_cbranch_scc1 L_k_next")
    a(f"  ds_add_u32 v112, v113 offset:{FL+F_K}")
    a("  v_add_u32 v112, 4, v112")
    a("L_k_next:")
    a("  s_mov_b64 exec, -1")
    a("  v_add_u32 v108, 32, v108")
    a("  s_cmp_lt_u32 s30, 16")
    a("  s_cbranch_scc1 L_k")
    stamp(5)
    a("  s_mov_b32 s30, 0")
    a("  v_mov_b32 v112, 0")
    lds_wait(13, FL+F_P, 1, 3, extra=lambda: a(f"  ds_read_b128 v[{PA}:{PA+3}], v109"))
    def crossV():
        a("  s_and_b32 s31, s30, 3")
        a("  s_cmp_eq_u32 s31, 3")
        a(f"  s_cselect_b32 s31, {BIG}, s77")
        a("  s_add_u32 s28, s28, s31")
    def vstep(k):
        t = k % 3; i = k // 3; r = RING + 4*(k % R)
        if t == 0:
            if i in (0, 4): a("  s_waitcnt lgkmcnt(0)")
            p = (PA if i < 4 else PB) + (i & 3)
            for e in range(4): a(f"  v_and_b32 v{AOP+e}, v{p}, v{VM+e}")
            if i == 0: a(f"  ds_read_b128 v[{PB}:{PB+3}], v109 offset:16")
            if i == 4: a(f"  ds_read_b128 v[{PA}:{PA+3}], v109 offset:32")
        c = f"v[{ACC+4*t}:{ACC+4*t+3}]"
        a(f"  v_mfma_f32_16x16x32_bf16 {c}, v[{AOP}:{AOP+3}], v[{r}:{r+3}], {c}")
    def vflush():
        a("  s_mov_b64 exec, s[34:35]")
        for t in range(3): a(f"  ds_write_b128 v111, v[{ACC+4*t}:{ACC+4*t+3}] offset:{256*t}")
        a("  s_mov_b64 exec, 1")
        a(f"  ds_add_u32 v112, v113 offset:{FL+F_V}")
        a("  s_mov_b64 exec, -1")
    a("L_v:")
    a("  s_and_b32 s31, s30, 3")
    a("  s_cbranch_scc1 L_v_body")
    a("  s_lshr_b32 s31, s30, 2")
    a("  s_add_u32 s31, s31, 2")
    a("  s_min_u32 s31, s31, 4")
    lds_wait(13, FL+F_P, "s31", 3)
    for k in range(12): a(f"  v_mov_b32 v{ACC+k}, 0")
    a("L_v_body:")
    for k in range(24):
        pace(N)
        issue(k + LEAD, crossV)
        vstep(k)
    a("  v_add_u32 v109, 32, v109")
    a("  s_mov_b64 exec, 1")
    a(f"  ds_add_u32 v13, v113 offset:{FL+F_G}")
    a("  s_mov_b64 exec, -1")
    a("  s_add_u32 s30, s30, 1")
    a("  s_and_b32 s31, s30, 3")
    a("  s_cbranch_scc1 L_v_next")
    vflush()
    a("  s_waitcnt lgkmcnt(0)")
    a("  v_add_u32 v112, 4, v112")
    a("  v_add_u32 v111, 6144, v111")
    a("L_v_next:")
    a("  s_cmp_lt_u32 s30, 15")
    a("  s_cbranch_scc1 L_v")
    for k in range(24):
        if k + LEAD < 24:
            pace(N2)
            issue(k + LEAD, lambda: None)
        else:
            a(f"  s_waitcnt vmcnt({23-k})")
        vstep(k)
    stamp(6)
    vflush()
    a("  s_waitcnt lgkmcnt(0)")
    stamp(7)
    stamp_flush()
    a("L_end:")
    a("  s_endpgm")
    a('.section .rodata,"a"')
    a(".p2align 6")
    a(f".amdhsa_kernel {NAME}")
    a("  .amdhsa_next_free_vgpr 168")
    a("  .amdhsa_next_free_sgpr 96")
    a("  .amdhsa_accum_offset 168")
    a("  .amdhsa_group_segment_fixed_size 0")
    a("  .amdhsa_kernarg_size 96")
    a("  .amdhsa_user_sgpr_count 2")
    a("  .amdhsa_user_sgpr_kernarg_segment_ptr 1")
    a("  .amdhsa_system_sgpr_workgroup_id_x 1")
    a("  .amdhsa_float_denorm_mode_32 3")
    a(".end_amdhsa_kernel")
    return a.fix()

if __name__ == "__main__":
    import json
    kw = json.loads(sys.argv[2]) if len(sys.argv) > 2 else {}
    open(sys.argv[1], "w").write(gen(**kw))
```

```python
import sys, struct
from asmlib import Asm

NAME = "parallel_sum__mha_block_cached__glu_gated_reglu__decode_kernel"
HEADER = open("parallel_sum__mha_block_cached__glu_gated_reglu__decode.s.ref").read().split("; Override launch")[0]

def f32(x): return "0x%08x" % struct.unpack("<I", struct.pack("<f", x))[0]

FL, QB, XN, QS, SB, OB, WB, GB, LDS_END = 0, 256, 2048, 4608, 6144, 22528, 53248, 94208, 109568
F_Q, F_P, F_G, F_K, F_V = 0, 4, 8, 16, 32
E3, E1, E4, E5, WS_END = 0x1000, 0x10000, 0x80000, 0x280000, 0x300000
RS = 1536
STAMP = 0x500000
HEADB = 12582912
KVB = 402653184

def gen(N=5, NW=5, N2=11, LEAD=11, stamps=False, prefetch=True, pol="nt", hs="sc1", sleepg=1, bar_at=30, delay=8, sleepb=32, sleepq=4, q0pre=0, qdelay=4, dbg='', hl=None, h1=None, sleepv=1, gl=None, gl1=None, gq=None, g3=None, g5=None, xp='', pfp='', loc=True, dbuf=True, delay5=8):
    if hl is None: hl = hs
    if h1 is None: h1 = hs
    a = Asm()
    R = 12
    assert N <= LEAD < R and N2 <= LEAD
    a(HEADER.rstrip("\n"))
    a("; Override launch geometry by editing the next line (default: block=256,")
    a(f"; @launch grid=(256,1,1) block=(320,1,1) lds={LDS_END}")
    a('.amdgcn_target "amdgcn-amd-amdhsa--gfx950"')
    a(".text")
    a(f".globl {NAME}")
    a(".p2align 8")
    a(f".type {NAME},@function")
    a(f"{NAME}:")
    uid = [0]
    def lab(p):
        uid[0] += 1; return f"L_{p}_{uid[0]}"
    def srd(d, p, n):
        a(f"  s_mov_b32 s{d}, s{p}"); a(f"  s_mov_b32 s{d+1}, s{p+1}")
        a(f"  s_mov_b32 s{d+2}, {n}"); a(f"  s_mov_b32 s{d+3}, 0x20000")
    PX, PK, PV, PWQ, PWO, PWG, PWU, PWD, POUT, PWS = 36, 38, 40, 42, 44, 48, 50, 52, 54, 58
    nstamp = [0]
    def stamp(idx):
        if stamps:
            a("  s_memrealtime s[78:79]"); a("  s_waitcnt lgkmcnt(0)"); a(f"  s_mov_b32 s{80+idx}, s78")
    def stamp_flush():
        if stamps:
            srd(24, PWS, 0x1000000)
            a("  s_mov_b64 exec, -1")
            a("  s_mul_i32 s76, s2, 5"); a("  s_add_u32 s76, s76, s3"); a("  s_lshl_b32 s76, s76, 6"); a(f"  s_add_u32 s76, s76, {STAMP}")
            a("  s_getreg_b32 s95, hwreg(20)")
            for g in range(4):
                for k in range(4): a(f"  v_mov_b32 v{16+4*g+k}, s{80+4*g+k}")
            a("  v_mov_b32 v15, 0")
            a("  s_mov_b64 exec, 1")
            for g in range(4): a(f"  buffer_store_dwordx4 v[{16+4*g}:{19+4*g}], v15, s[24:27], s76 offen offset:{16*g}")
            a("  s_waitcnt vmcnt(0)")

    if stamps:
        a("  s_memrealtime s[80:81]")
    a("  s_cmp_ge_u32 s2, 256")
    a("  s_cbranch_scc1 L_end")
    a("  s_load_dwordx16 s[36:51], s[0:1], 0")
    a("  s_load_dwordx8 s[52:59], s[0:1], 64")
    if stamps:
        for k in range(82, 96): a(f"  s_mov_b32 s{k}, 0")
    a("  v_lshrrev_b32 v3, 6, v0")
    a("  v_and_b32 v1, 63, v0                 ; lane")
    a("  v_readfirstlane_b32 s3, v3           ; wave")
    a("  s_and_b32 s4, s2, 7                  ; x")
    a("  s_lshr_b32 s5, s2, 3                 ; j")
    a("  v_lshrrev_b32 v9, 3, v1")
    a("  v_and_b32 v10, 7, v1")
    VM = 4
    a("  v_and_b32 v3, 1, v10")
    a("  v_lshlrev_b32 v3, 4, v3")
    a("  v_mov_b32 v8, 0xffff")
    a("  v_lshlrev_b32 v8, v3, v8")
    a("  v_lshrrev_b32 v3, 1, v10")
    for k in range(4):
        a(f"  v_cmp_eq_u32 vcc, {k}, v3")
        a(f"  v_cndmask_b32 v{VM+k}, 0, v8, vcc")
    a("  v_lshrrev_b32 v3, 5, v1")
    a("  v_mul_u32_u24 v11, 768, v3")
    a("  v_lshl_add_u32 v11, v10, 5, v11")
    a("  v_and_b32 v3, 16, v1")
    a("  v_add_u32 v11, v11, v3")
    a("  v_lshlrev_b32 v12, 4, v1             ; lane*16")
    a("  s_mov_b32 s34, 0x00ff00ff")
    a("  s_mov_b32 s35, 0xff00ff00")
    a("  s_cmp_eq_u32 s3, 0")
    a("  s_cbranch_scc0 L_stream")

    def lds_wait(vaddr, off, val, vt, extra=None, sleep=1):
        L = lab("w"); D = lab("d")
        a("  s_mov_b32 s33, 0x100000")
        a(f"{L}:")
        a(f"  ds_read_b32 v{vt}, v{vaddr} offset:{off}")
        if extra: extra()
        a("  s_waitcnt lgkmcnt(0)")
        a(f"  v_readfirstlane_b32 s32, v{vt}")
        a(f"  s_cmp_ge_u32 s32, {val}")
        a(f"  s_cbranch_scc1 {D}")
        a(f"  s_sleep {sleep}")
        a("  s_sub_u32 s33, s33, 1")
        a(f"  s_cbranch_scc0 {L}")
        a(f"{D}:")
    def dppadd(op, d, ctrl):
        a(f"  {op}_dpp v{d}, v{d}, v{d} {ctrl} row_mask:0xf bank_mask:0xf")
    def swapred(op, regs, tmp, which):
        for i, d in enumerate(regs): a(f"  v_mov_b32 v{tmp+i}, v{d}")
        for i, d in enumerate(regs): a(f"  v_permlane{which}_swap_b32 v{d}, v{tmp+i}")
        if op:
            for i, d in enumerate(regs): a(f"  {op} v{d}, v{d}, v{tmp+i}")
    def allreduce(op, regs, tmp, upto=64):
        for ctrl in ("quad_perm:[1,0,3,2]", "quad_perm:[2,3,0,1]", "row_half_mirror", "row_mirror"):
            for d in regs: dppadd(op, d, ctrl)
        swapred(op, regs, tmp, 16)
        if upto == 64: swapred(op, regs, tmp, 32)
    def parreduce(regs, tmp):
        for ctrl in ("quad_perm:[2,3,0,1]", "row_ror:4", "row_ror:8"):
            for d in regs: dppadd("v_add_f32", d, ctrl)
        swapred("v_add_f32", regs, tmp, 16)

    TAG = 6
    WQ = 16
    XF = 136
    T = 146
    a("  v_lshlrev_b32 v13, 2, v1             ; lane*4")
    a("  v_mul_u32_u24 v14, 12288, v9")
    a("  v_lshl_add_u32 v14, v10, 4, v14")
    a("  s_and_b32 s28, s5, 7")
    a("  s_mul_i32 s29, s28, 80")
    a("  s_mul_i32 s28, s29, 12288")
    a("  s_and_b32 s30, s5, 24")
    a("  s_add_u32 s30, s30, s4")
    a("  s_mul_i32 s30, s30, 384")
    a("  s_add_u32 s28, s28, s30")
    a("  s_waitcnt lgkmcnt(0)")
    a(f"  s_load_dword s{TAG}, s[{PWS}:{PWS+1}], 0")
    srd(8, PX, 1280); srd(12, PWQ, 7864320); srd(16, PWS, WS_END)
    for k in range(5): a(f"  buffer_load_dword v{T+k}, v13, s[8:11], 0 offen offset:{256*k} {xp}")
    n = 0
    for i in range(10):
        for t in range(3):
            if n == bar_at: a("  s_barrier")
            r = WQ + 12*i + 4*t
            a(f"  buffer_load_dwordx4 v[{r}:{r+3}], v14, s[12:15], s28 offen offset:{128*t} {pol}")
            n += 1
        if i < 9: a("  s_add_u32 s28, s28, 98304")
    if bar_at >= 30: a("  s_barrier")
    stamp(1)
    a(f"  s_mov_b32 s7, {f32(1/640)}")
    a("  s_waitcnt vmcnt(30)")
    for k in range(5):
        a(f"  v_lshlrev_b32 v{XF+2*k}, 16, v{T+k}")
        a(f"  v_and_b32 v{XF+2*k+1}, 0xffff0000, v{T+k}")
    S = T+5
    a(f"  v_add_f32 v{S}, v{XF}, v{XF+1}")
    for k in range(2, 10): a(f"  v_add_f32 v{S}, v{S}, v{XF+k}")
    allreduce("v_add_f32", [S], T+6)
    a(f"  v_mul_f32 v{S}, s7, v{S}             ; mean")
    Q = T+7
    a(f"  v_sub_f32 v{T}, v{XF}, v{S}")
    a(f"  v_mul_f32 v{Q}, v{T}, v{T}")
    for k in range(1, 10):
        a(f"  v_sub_f32 v{T+(k&1)}, v{XF+k}, v{S}")
        a(f"  v_fmac_f32 v{Q}, v{T+(k&1)}, v{T+(k&1)}")
    allreduce("v_add_f32", [Q], T+6)
    a(f"  v_mul_f32 v{Q}, s7, v{Q}             ; var")
    a(f"  v_cvt_pk_bf16_f32 v{T}, v{S}, v{Q}")
    a(f"  v_lshlrev_b32 v{S}, 16, v{T}         ; bf16(mean)")
    a(f"  v_and_b32 v{Q}, 0xffff0000, v{T}     ; bf16(var)")
    a(f"  v_add_f32 v{Q}, {f32(1e-5)}, v{Q}")
    a(f"  v_cvt_pk_bf16_f32 v{Q}, v{Q}, v{Q}")
    a(f"  v_lshlrev_b32 v{Q}, 16, v{Q}")
    a(f"  v_sqrt_f32 v{Q}, v{Q}")
    a(f"  v_cvt_pk_bf16_f32 v{Q}, v{Q}, v{Q}")
    a(f"  v_lshlrev_b32 v{Q}, 16, v{Q}")
    a(f"  v_rcp_f32 v{Q}, v{Q}")
    a(f"  v_lshlrev_b32 v15, 3, v1")
    for k in range(5):
        x0, x1 = XF+2*k, XF+2*k+1
        a(f"  v_sub_f32 v{x0}, v{x0}, v{S}")
        a(f"  v_sub_f32 v{x1}, v{x1}, v{S}")
        a(f"  v_cvt_pk_bf16_f32 v{x1}, v{x0}, v{x1}")
        a(f"  v_lshlrev_b32 v{x0}, 16, v{x1}")
        a(f"  v_and_b32 v{x1}, 0xffff0000, v{x1}")
        a(f"  v_mul_f32 v{x0}, v{x0}, v{Q}")
        a(f"  v_mul_f32 v{x1}, v{x1}, v{Q}")
        a(f"  v_cvt_pk_bf16_f32 v{x0}, v{x0}, v{x0}")
        a(f"  v_cvt_pk_bf16_f32 v{x1}, v{x1}, v{x1}")
        a(f"  ds_write_b64 v15, v[{x0}:{x1}] offset:{XN+512*k}")
    a(f"  v_add_u32 v15, s29, v9")
    a(f"  v_lshlrev_b32 v15, 2, v15")
    a(f"  v_add_u32 v15, {XN}, v15")
    a("  s_waitcnt lgkmcnt(0)")
    a(f"  s_add_u32 s{TAG}, s{TAG}, 0x9e3779b0")
    a(f"  s_and_b32 s{TAG}, s{TAG}, 0xfffffff0")
    a("  s_getreg_b32 s20, hwreg(20, 0, 4)")
    a(f"  s_or_b32 s20, s20, s{TAG}")
    for k in range(5): a(f"  ds_read2_b32 v[{XF+2*k}:{XF+2*k+1}], v15 offset0:{16*k} offset1:{16*k+8}")
    AC = T+2
    AO = T+14
    a("  s_waitcnt lgkmcnt(0)")
    stamp(2)
    for i in range(10):
        ao = AO + 4*(i & 1)
        for k in range(4): a(f"  v_and_b32 v{ao+k}, v{XF+i}, v{VM+k}")
        a(f"  s_waitcnt vmcnt({27-3*i})")
        for t in range(3):
            r = WQ + 12*i + 4*t
            c = f"v[{AC+4*t}:{AC+4*t+3}]"
            a(f"  v_mfma_f32_16x16x32_bf16 {c}, v[{ao}:{ao+3}], v[{r}:{r+3}], {c if i else 0}")
    a("  v_mul_u32_u24 v14, 12, v1            ; lane*12")
    a("  s_lshl_b32 s28, s4, 5")
    a("  s_add_u32 s28, s28, s5")
    a("  s_lshl_b32 s31, s28, 10")
    a(f"  s_add_u32 s30, s31, {E1}")
    a("  s_mov_b64 exec, s[34:35]")
    for t in range(3): a(f"  ds_write_b128 v11, v[{AC+4*t}:{AC+4*t+3}] offset:{QS+256*t}")
    a("  s_mov_b64 exec, -1")
    G = 16
    for k in range(3): a(f"  ds_read_b32 v{G+k}, v14 offset:{QS+4*k}")
    for k in range(3): a(f"  ds_read_b32 v{G+4+k}, v14 offset:{QS+768+4*k}")
    a(f"  v_mov_b32 v{G+3}, s20")
    a("  s_waitcnt lgkmcnt(0)")
    for k in range(3): a(f"  v_add_f32 v{G+k}, v{G+k}, v{G+4+k}")
    a(f"  buffer_store_dwordx4 v[{G}:{G+3}], v12, s[16:19], s30 offen {h1}")
    stamp(3)

    def lstore(*txts):
        if not loc:
            for txt in txts: a(f"  {txt} {hl}")
            return
        X = lab("sx"); Y = lab("sy")
        a("  s_cmp_eq_u32 s0, 0")
        a(f"  s_cbranch_scc1 {X}")
        for txt in txts: a(f"  {txt} sc1")
        a(f"  s_branch {Y}")
        a(f"{X}:")
        for txt in txts: a(f"  {txt}")
        a(f"{Y}:")
    def progress_delay(n):
        a(f"  ds_read_b32 v3, v13 offset:{FL+F_G}")
        a("  s_waitcnt lgkmcnt(0)")
        a("  v_readfirstlane_b32 s77, v3")
        a(f"  s_add_u32 s77, s77, {n}")
        a("  s_min_u32 s77, s77, 120")
        lds_wait(13, FL+F_G, "s77", 3, sleep=8)
    def gather(nl, voff, soffs, dst, sleep=None, tail=False, lp=None, first=None, xid=False, tagreg=None, bsleep=None):
        L = lab("g"); D = lab("gd")
        a("  s_mov_b32 s33, 0x10000")
        if lp is None: lp = hs
        if first is not None:
            C = lab("gc")
            for i in range(nl):
                s, imm = soffs[i]
                a(f"  buffer_load_dwordx4 v[{dst+4*i}:{dst+4*i+3}], v{voff}, s[16:19], {s} offen offset:{imm} {first}")
            a(f"  s_branch {C}")
        a(f"{L}:")
        for i in range(nl):
            s, imm = soffs[i]
            a(f"  buffer_load_dwordx4 v[{dst+4*i}:{dst+4*i+3}], v{voff}, s[16:19], {s} offen offset:{imm} {lp}")
        if first is not None: a(f"{C}:")
        if nl == 1:
            a("  s_waitcnt vmcnt(0)")
            a(f"  v_cmp_ne_u32 vcc, {tagreg or 's%d' % TAG}, v{dst+3}")
        else:
            for i in range(nl):
                a(f"  s_waitcnt vmcnt({nl-1-i})")
                tg = "s20" if xid else (tagreg or f"s{TAG}")
                if i == 0: a(f"  v_xor_b32 v3, {tg}, v{dst+3}")
                else:
                    a(f"  v_xor_b32 v2, {tg}, v{dst+4*i+3}")
                    a(f"  v_or_b32 v3, v3, v2")
            a("  v_cmp_lt_u32 vcc, 15, v3" if xid else "  v_cmp_ne_u32 vcc, 0, v3")
        a("  s_and_b64 exec, exec, vcc")
        a(f"  s_cbranch_scc0 {D}")
        if tail:
            S = lab("gs")
            if sleepg: a(f"  s_sleep {sleepg}")
            a("  s_cmp_eq_u32 s30, 4")
            a(f"  s_cbranch_scc1 {S}")
            a(f"  s_sleep {bsleep or sleepb}")
            a(f"{S}:")
        else:
            a(f"  s_sleep {sleep}")
        a("  s_sub_u32 s33, s33, 1")
        a(f"  s_cbranch_scc0 {L}")
        a(f"{D}:")
        a("  s_mov_b64 exec, -1")

    G = 32
    a("  s_lshl_b32 s28, s4, 15")
    a(f"  s_add_u32 s28, s28, {E1}")
    a("  v_mul_u32_u24 v15, 6, v1")
    a("  v_mov_b32 v13, 0")
    a("  s_mov_b32 s30, 0")
    a("  s_mov_b32 s0, 0")
    if q0pre: a(f"  s_sleep {q0pre}")
    a("L_hq:")
    a("  s_add_u32 s29, s28, 4096")
    gather(8, 12, [("s28", 1024*i) for i in range(4)] + [("s29", 1024*i) for i in range(4)], G, sleep=sleepq, lp=gq, xid=True)
    a("  v_readfirstlane_b32 s29, v3")
    a("  s_or_b32 s0, s0, s29")
    for i in range(1, 8):
        for k in range(3): a(f"  v_add_f32 v{G+k}, v{G+k}, v{G+4*i+k}")
    a(f"  v_cvt_pk_bf16_f32 v{G}, v{G}, v{G+1}")
    a(f"  v_cvt_pk_bf16_f32 v{G+2}, v{G+2}, v{G+2}")
    a("  s_add_u32 s30, s30, 1")
    a("  v_mov_b32 v3, s30")
    a(f"  ds_write_b16 v15, v{G} offset:{QB}")
    a(f"  ds_write_b16_d16_hi v15, v{G} offset:{QB+2}")
    a(f"  ds_write_b16 v15, v{G+2} offset:{QB+4}")
    a(f"  ds_write_b32 v13, v3 offset:{FL+F_Q}")
    if stamps:
        a("  s_cmp_eq_u32 s30, 1"); a("  s_cbranch_scc0 L_nst4"); stamp(4); a("L_nst4:")
    if qdelay:
        a("  s_cmp_eq_u32 s30, 1"); a("  s_cbranch_scc0 L_hq_nd")
        lds_wait(13, FL+F_G, qdelay, 3, sleep=8)
        a("L_hq_nd:")
    a("  v_add_u32 v15, 384, v15")
    a("  s_add_u32 s28, s28, 8192")
    a("  s_cmp_lt_u32 s30, 4")
    a("  s_waitcnt lgkmcnt(0)")
    a("  s_cbranch_scc1 L_hq")
    stamp(5)

    if 'noH' in dbg:
        a("  v_mov_b32 v3, 4")
        a(f"  ds_write_b32 v13, v3 offset:{FL+F_P}")
        a("  s_waitcnt lgkmcnt(0)")
        stamp_flush()
        a("  s_endpgm")
    SC = 16
    a("  v_lshlrev_b32 v15, 9, v9")
    a("  v_lshl_add_u32 v15, v10, 4, v15")
    a(f"  v_add_u32 v15, {SB}, v15")
    a("  v_and_b32 v2, 31, v1")
    a("  v_lshlrev_b32 v48, 4, v2             ; (lane&31)*16")
    a("  s_lshl_b32 s28, s4, 9")
    a(f"  s_add_u32 s28, s28, {E3}            ; E3 + x*512")
    a("  s_lshl_b32 s29, s5, 4")
    a("  v_mov_b32 v49, s29                   ; j*16")
    a(f"  s_mov_b32 s7, {f32(192**-0.5)}")
    a(f"  s_mov_b32 s21, {f32(1.4426950408889634)}")
    a("  s_mov_b32 s30, 0")
    a("  v_mov_b32 v50, 0                     ; 4*round")
    a("L_hk:")
    lds_wait(50, FL+F_K, 4, 3, sleep=8)
    for i in range(4): a(f"  ds_read_b128 v[{SC+4*i}:{SC+4*i+3}], v15 offset:{4096*i}")
    a("  s_waitcnt lgkmcnt(0)")
    for k in range(8):
        x0, x1 = SC+2*k, SC+2*k+1
        a(f"  v_cvt_pk_bf16_f32 v{x1}, v{x0}, v{x1}")
        a(f"  v_lshlrev_b32 v{x0}, 16, v{x1}")
        a(f"  v_and_b32 v{x1}, 0xffff0000, v{x1}")
        a(f"  v_mul_f32 v{x0}, s7, v{x0}")
        a(f"  v_mul_f32 v{x1}, s7, v{x1}")
        a(f"  v_cvt_pk_bf16_f32 v{x1}, v{x0}, v{x1}")
        a(f"  v_lshlrev_b32 v{x0}, 16, v{x1}")
        a(f"  v_and_b32 v{x1}, 0xffff0000, v{x1}")
    M = 52; Ls = 53
    a(f"  v_max_f32 v{M}, v{SC}, v{SC+1}")
    for k in range(1, 8): a(f"  v_max3_f32 v{M}, v{M}, v{SC+2*k}, v{SC+2*k+1}")
    allreduce("v_max_f32", [M], 56)
    for k in range(16):
        a(f"  v_sub_f32 v{32+k}, v{SC+k}, v{M}")
        a(f"  v_mul_f32 v{32+k}, s21, v{32+k}")
        a(f"  v_exp_f32 v{32+k}, v{32+k}")
    a(f"  v_add_f32 v{Ls}, v32, v33")
    for k in range(2, 16): a(f"  v_add_f32 v{Ls}, v{Ls}, v{32+k}")
    allreduce("v_add_f32", [Ls], 56)
    a(f"  v_mov_b32 v54, 0")
    a(f"  v_mov_b32 v55, s{TAG}")
    a("  s_mov_b64 exec, 1")
    lstore("buffer_store_dwordx4 v[52:55], v49, s[16:19], s28 offen")
    a("  s_mov_b64 exec, -1")
    if delay: progress_delay(delay)
    gather(1, 48, [("s28", 0)], 60, sleep=sleepb, lp=g3)
    a("  v_mov_b32 v64, v60")
    allreduce("v_max_f32", [64], 56, upto=32)
    a("  v_sub_f32 v60, v60, v64")
    a("  v_mul_f32 v60, s21, v60")
    a("  v_exp_f32 v60, v60")
    a("  v_mul_f32 v61, v61, v60")
    allreduce("v_add_f32", [61], 56, upto=32)
    a("  v_rcp_f32 v62, v61")
    a("  v_fma_f32 v63, -v61, v62, 1.0")
    a("  v_fma_f32 v62, v63, v62, v62            ; refined 1/L")
    for k in range(16):
        a(f"  v_sub_f32 v{32+k}, v{SC+k}, v64")
        a(f"  v_mul_f32 v{32+k}, s21, v{32+k}")
        a(f"  v_exp_f32 v{32+k}, v{32+k}")
    for k in range(16):
        a(f"  v_mul_f32 v{32+k}, v{32+k}, v62")
        a(f"  v_cvt_pk_bf16_f32 v{32+k}, v{32+k}, v{32+k}")
    a("  s_add_u32 s30, s30, 1")
    a("  v_mov_b32 v3, s30")
    for i in range(4): a(f"  ds_write_b128 v15, v[{32+4*i}:{35+4*i}] offset:{4096*i}")
    a(f"  ds_write_b32 v13, v3 offset:{FL+F_P}")
    a("  s_waitcnt lgkmcnt(0)")
    a("  v_add_u32 v15, 128, v15")
    a("  v_add_u32 v50, 4, v50")
    a("  s_add_u32 s28, s28, 4096")
    a("  s_cmp_lt_u32 s30, 4")
    a("  s_cbranch_scc1 L_hk")
    stamp(6)

    if 'noC' in dbg:
        stamp_flush()
        a("  s_endpgm")
    a("  s_and_b32 s28, s5, 15")
    a("  s_mul_i32 s28, s28, 40")
    a("  v_add_u32 v15, s28, v9")
    a("  v_lshlrev_b32 v15, 2, v15")
    a(f"  v_add_u32 v15, {XN}, v15")
    for k in range(5): a(f"  ds_read_b32 v{XF+k}, v15 offset:{32*k}")
    a(f"  v_add_u32 v15, {GB}, v12")
    for q in range(15): a(f"  ds_read_b128 v[{16+4*q}:{19+4*q}], v15 offset:{1024*q}")
    a("  s_waitcnt lgkmcnt(0)")
    for i in range(5):
        ao = AO + 4*(i & 1)
        for k in range(4): a(f"  v_and_b32 v{ao+k}, v{XF+i}, v{VM+k}")
        for t in range(3):
            r = 16 + 12*i + 4*t
            cb = 80 + 12*(i & 3) + 4*t
            c = f"v[{cb}:{cb+3}]"
            a(f"  v_mfma_f32_16x16x32_bf16 {c}, v[{ao}:{ao+3}], v[{r}:{r+3}], {c if i == 4 else 0}")
    a("  s_mov_b64 exec, s[34:35]")
    for i in (1, 2, 3, 0):
        for t in range(3):
            cb = 80 + 12*i + 4*t
            a(f"  ds_write_b128 v11, v[{cb}:{cb+3}] offset:{OB+1536*i+256*t}")
    a("  s_mov_b64 exec, -1")

    Y = 136
    WR = 16
    WP = 48
    O = 80
    a(f"  v_add_u32 v14, {OB}, v12")
    a("  v_lshlrev_b32 v15, 2, v1")
    a(f"  v_add_u32 v15, {WB}, v15")
    a("  v_lshlrev_b32 v145, 5, v1            ; lane*32")
    a("  v_lshrrev_b32 v2, 4, v1")
    a("  v_and_b32 v3, 15, v1")
    a(f"  v_mul_u32_u24 v146, {RS}, v2")
    a("  v_lshl_add_u32 v146, v3, 4, v146")
    a("  v_lshrrev_b32 v2, 2, v1")
    a("  v_and_b32 v3, 3, v1")
    a("  v_lshlrev_b32 v147, 10, v2")
    a("  v_lshl_add_u32 v147, v3, 4, v147")
    a("  s_lshl_b32 s22, s2, 4")
    a("  v_lshl_add_u32 v148, v3, 2, s22")
    a(f"  buffer_load_dword v149, v148, s[8:11], 0 offen {xp}")
    srd(12, POUT, 1280)
    a("  s_mul_hi_u32 s24, s5, 0x33333334     ; jr")
    a("  s_mul_i32 s25, s24, 5")
    a("  s_sub_u32 s25, s5, s25               ; jc")
    a("  s_min_u32 s24, s24, 5")
    a("  s_lshl_b32 s28, s4, 5")
    a("  s_add_u32 s31, s28, s5")
    a(f"  s_mul_i32 s31, s31, {RS}")
    a(f"  s_add_u32 s31, s31, {E4}")
    a(f"  s_mul_i32 s28, s28, {RS}")
    a("  s_lshl_b32 s29, s24, 8")
    a("  s_add_u32 s28, s28, s29")
    a(f"  s_add_u32 s28, s28, {E4}")
    a("  s_mul_i32 s23, s25, 48")
    a("  s_mul_i32 s29, s4, 6")
    a("  s_add_u32 s23, s23, s29")
    a("  s_add_u32 s23, s23, s24")
    a("  s_lshl_b32 s23, s23, 10")
    a(f"  s_add_u32 s23, s23, {E5}")
    a("  s_lshr_b32 s22, s2, 4")
    a("  s_mul_i32 s22, s22, 49152")
    a("  s_and_b32 s29, s2, 15")
    a("  s_lshl_b32 s29, s29, 6")
    a("  s_add_u32 s22, s22, s29")
    a(f"  s_add_u32 s22, s22, {E5}")
    a("  s_mov_b32 s20, 0x05040100")
    a("  s_mov_b32 s21, 0x07060302")
    a("  s_mov_b32 s30, 0")
    a("  v_mov_b32 v150, 0                    ; 4*it")
    for k in range(4): a(f"  v_mov_b32 v{Y+k}, 0")
    a("L_hc:")
    for q in range(16): a(f"  ds_read2st64_b32 v[{WR+2*q}:{WR+2*q+1}], v15 offset0:{2*q} offset1:{2*q+1}")
    a(f"  s_or_b32 s1, s{TAG}, s30")
    for i in range(8): a(f"  s_add_u32 s{60+i}, s28, {4*RS*i}")
    for i in range(3): a(f"  s_add_u32 s{68+i}, s22, {16384*i}")
    for r in (114, 115, 118, 119, 142, 143): a(f"  v_mov_b32 v{r}, s1")
    a("  s_waitcnt lgkmcnt(0)")
    for q in range(16):
        a(f"  v_perm_b32 v{WP+2*q}, v{WR+2*q+1}, v{WR+2*q}, s20")
        a(f"  v_perm_b32 v{WP+2*q+1}, v{WR+2*q+1}, v{WR+2*q}, s21")
    a("  s_cmp_eq_u32 s30, 0")
    a("  s_cbranch_scc1 L_hc_go")
    lds_wait(150, FL+F_V-4, 4, 3, sleep=sleepv)
    a("L_hc_go:")
    if stamps:
        a("  s_cmp_eq_u32 s30, 4"); a("  s_cbranch_scc0 L_nst7"); stamp(7); a("L_nst7:")
    a("  s_mov_b32 exec_hi, 0xffff")
    for p in range(8): a(f"  ds_read_b128 v[{O+4*p}:{O+4*p+3}], v14 offset:{768*p}")
    def pk(d, x, y): a(f"  v_pk_add_f32 v[{d}:{d+1}], v[{x}:{x+1}], v[{y}:{y+1}]")
    for p in range(4):
        a(f"  s_waitcnt lgkmcnt({6-2*p})")
        for h in (0, 2): pk(O+8*p+h, O+8*p+h, O+8*p+4+h)
        if p & 1:
            for h in (0, 2): pk(O+8*(p-1)+h, O+8*(p-1)+h, O+8*p+h)
    pk(112, O, O+16); pk(116, O+2, O+18)
    if 'noS4' in dbg:
        a("  s_mov_b64 exec, -1"); a("  s_cmp_lg_u32 s30, 4"); a("  s_cbranch_scc1 L_hc_next"); a("  s_mov_b32 exec_hi, 0xffff")
    lstore("buffer_store_dwordx4 v[112:115], v145, s[16:19], s31 offen", "buffer_store_dwordx4 v[116:119], v145, s[16:19], s31 offen offset:16")
    a("  s_mov_b64 exec, -1")
    if delay:
        a("  s_cmp_eq_u32 s30, 4"); a("  s_cbranch_scc1 L_hc_nd1")
        progress_delay(delay)
        a("L_hc_nd1:")
    gather(8, 146, [(f"s{60+i}", 0) for i in range(8)], O, tail=True, lp=gl, tagreg="s1")
    if stamps:
        a("  s_cmp_eq_u32 s30, 4"); a("  s_cbranch_scc0 L_nst8"); stamp(8); a("L_nst8:")
    pk(O, O, O+4); pk(O+8, O+8, O+12); pk(O+16, O+16, O+20); pk(O+24, O+24, O+28)
    pk(O, O, O+8); pk(O+16, O+16, O+24)
    a("  s_cmp_eq_u32 s30, 0")
    a("  s_cbranch_scc1 L_hc_ffn")
    pk(O, O, O+16)
    swapred("v_add_f32", [O, O+1], O+4, 16)
    swapred("v_add_f32", [O, O+1], O+4, 32)
    a("L_hc_pack:")
    a(f"  v_cvt_pk_bf16_f32 v{O}, v{O}, v{O+1}")
    for g in range(16):
        for h in range(2):
            a(f"  v_dot2c_f32_bf16_dpp v{Y+2*(g&1)+h}, v{O}, v{WP+2*g+h} row_newbcast:{g} row_mask:0xf bank_mask:0xf")
    if 'noE5f' in dbg: a("  s_cmp_lg_u32 s30, 4")
    else: a("  s_and_b32 s29, s30, 3")
    a("  s_cbranch_scc1 L_hc_next")
    a("  s_cmp_ge_u32 s5, 30")
    a("  s_cbranch_scc1 L_hc_fin")
    pk(140, Y, Y+2)
    a(f"  buffer_store_dwordx4 v[140:143], v12, s[16:19], s23 offen {hs}")
    if stamps:
        a("  s_cmp_eq_u32 s30, 4"); a("  s_cbranch_scc0 L_nst9"); stamp(9); a("L_nst9:")
    a("  s_cmp_ge_u32 s2, 80")
    a("  s_cbranch_scc1 L_hc_fin")
    G = O
    a("  s_cmp_eq_u32 s30, 4"); a("  s_cbranch_scc1 L_hc_nd2")
    progress_delay(delay5)
    a("L_hc_nd2:")
    gather(3, 147, [(f"s{68+i}", 0) for i in range(3)], G, tail=True, lp=g5, tagreg="s1", bsleep=32)
    pk(G, G, G+4); pk(G, G, G+8)
    for ctrl in ("row_ror:4", "row_ror:8"):
        for d in (G, G+1): dppadd("v_add_f32", d, ctrl)
    swapred("v_add_f32", [G, G+1], G+4, 16)
    swapred("v_add_f32", [G, G+1], G+4, 32)
    a(f"  v_cvt_pk_bf16_f32 v{G}, v{G}, v{G+1}")
    a(f"  v_lshlrev_b32 v{G+4}, 16, v{G}")
    a(f"  v_and_b32 v{G+5}, 0xffff0000, v{G}")
    pk(G+4, G+4, 152)
    a(f"  v_cvt_pk_bf16_f32 v{G+2}, v{G+4}, v{G+5}")
    a(f"  v_lshlrev_b32 v{G+4}, 16, v{G+2}")
    a(f"  v_and_b32 v{G+5}, 0xffff0000, v{G+2}")
    pk(G+4, G+4, 154)
    a(f"  v_cvt_pk_bf16_f32 v{G+1}, v{G+4}, v{G+5}")
    a("  s_cmp_eq_u32 s30, 0")
    a("  s_cbranch_scc1 L_hc_keep")
    a("  s_mov_b64 exec, 15")
    a(f"  buffer_store_dword v{G+1}, v148, s[12:15], 0 offen")
    a("  s_cmp_eq_u32 s2, 0")
    a("  s_cbranch_scc0 L_hc_fin")
    a("  s_mov_b64 exec, 1")
    a(f"  v_mov_b32 v107, s{TAG}")
    a(f"  buffer_store_dword v107, v13, s[16:19], 0 offen")
    a("  s_branch L_hc_fin")
    a("L_hc_keep:")
    a(f"  v_lshlrev_b32 v154, 16, v{G}")
    a(f"  v_and_b32 v155, 0xffff0000, v{G}")
    a(f"  v_lshlrev_b32 v152, 16, v149        ; x pair")
    a(f"  v_and_b32 v153, 0xffff0000, v149")
    a("L_hc_fin:")
    a("  s_mov_b64 exec, -1")
    for k in range(4): a(f"  v_mov_b32 v{Y+k}, 0")
    a(f"  s_add_u32 s23, s23, {240*1024}")
    a(f"  s_add_u32 s22, s22, {240*1024}")
    a("L_hc_next:")
    a("  v_add_u32 v14, 6144, v14")
    a("  v_add_u32 v15, 8192, v15")
    a("  v_add_u32 v150, 4, v150")
    if dbuf:
        a("  s_bitcmp1_b32 s30, 0")
        a(f"  s_mov_b32 s29, {256*RS}")
        a(f"  s_cselect_b32 s29, {(-256*RS) & 0xffffffff}, s29")
        a("  s_add_u32 s31, s31, s29")
        a("  s_add_u32 s28, s28, s29")
    else:
        a(f"  s_add_u32 s31, s31, {256*RS}")
        a(f"  s_add_u32 s28, s28, {256*RS}")
    a("  s_add_u32 s30, s30, 1")
    a("  s_cmp_lt_u32 s30, 5")
    a("  s_cbranch_scc1 L_hc")
    stamp(10)
    stamp_flush()
    a("  s_endpgm")
    a("L_hc_ffn:")
    regs = [O, O+1, O+16, O+17]
    swapred("v_add_f32", regs, O+4, 16)
    swapred("v_add_f32", regs, O+4, 32)
    for k in range(2):
        a(f"  v_cvt_pk_bf16_f32 v{O+16+k}, v{O+k}, v{O+16+k}")
        a(f"  v_lshlrev_b32 v{O+k}, 16, v{O+16+k}")
        a(f"  v_and_b32 v{O+16+k}, 0xffff0000, v{O+16+k}")
        a(f"  v_cmp_lt_f32 vcc, 0, v{O+k}")
        a(f"  v_cndmask_b32 v{O+4}, 0, 1.0, vcc")
        a(f"  v_mul_f32 v{O+k}, v{O+k}, v{O+4}")
        a(f"  v_mul_f32 v{O+k}, v{O+k}, v{O+16+k}")
    a("  s_branch L_hc_pack")

    a(".p2align 6")
    a("L_stream:")
    RING = 16; QF = 64; KA = 76; KC = 77
    AOP = 84; PA = 88; PB = 92; ACC = 96
    a("  s_setprio 1")
    a("  s_sub_u32 s6, s3, 1                  ; w")
    a("  v_mov_b32 v13, 0")
    a("  v_lshlrev_b32 v3, 2, v1")
    a(f"  ds_write_b32 v3, v13 offset:{FL}")
    if prefetch:
        a("  s_cmp_eq_u32 s6, 0")
        a("  s_cbranch_scc0 L_nopf")
        a("  s_getpc_b64 s[24:25]")
        a("L_pc:")
        a(f"  s_sub_u32 s24, s24, L_pc-{NAME}")
        a("  s_subb_u32 s25, s25, 0")
        a("  v_lshlrev_b32 v3, 7, v1")
        a(f"  v_min_u32 v3, L_end-{NAME}, v3")
        a(f"  global_load_dword v14, v3, s[24:25] {pfp}")
        a("L_nopf:")
    a("  v_mul_u32_u24 v2, 384, v9")
    a("  v_lshl_add_u32 v2, v10, 4, v2")
    a("  v_mul_u32_u24 v15, 3072, v9")
    a("  v_lshl_add_u32 v15, v10, 4, v15")
    a("  s_lshl_b32 s7, s6, 12")
    a("  v_lshl_add_u32 v109, v9, 9, s7")
    a(f"  v_add_u32 v109, {SB}, v109")
    a("  v_lshl_add_u32 v108, v10, 2, v109")
    a("  v_lshlrev_b32 v110, 4, v10")
    a("  s_mul_i32 s7, s6, 1536")
    a(f"  s_add_u32 s7, s7, {OB+6144}")
    a("  v_add_u32 v111, s7, v11")
    a("  v_mov_b32 v112, 0                    ; 4*round")
    a("  v_mov_b32 v113, 1")
    for s in range(8):
        a(f"  s_mov_b32 s{60+2*s}, {hex(0x01010101 << s)}")
        a(f"  s_mov_b32 s{61+2*s}, {hex(0x01010101 << s)}")
    a(f"  s_mul_i32 s29, s4, {HEADB}")
    a("  s_lshl_b32 s7, s5, 2")
    a("  s_add_u32 s7, s7, s6")
    a("  s_mul_i32 s7, s7, 3072")
    a("  s_add_u32 s29, s29, s7")
    a("  s_mov_b32 s28, s29")
    a("  s_waitcnt lgkmcnt(0)")
    srd(8, PK, KVB)
    srd(12, PWO, 7864320); srd(16, PWD, 1966080)
    a("  s_cmp_lt_u32 s5, 16")
    a(f"  s_cselect_b32 s20, s{PWG}, s{PWU}")
    a(f"  s_cselect_b32 s21, s{PWG+1}, s{PWU+1}")
    a("  s_mov_b32 s22, 1966080"); a("  s_mov_b32 s23, 0x20000")
    a("  s_mul_hi_u32 s25, s5, 0x33333334     ; jr")
    a("  s_mul_i32 s7, s25, 5"); a("  s_sub_u32 s7, s5, s7"); a("  s_lshl_b32 s7, s7, 8")
    a("  s_mul_i32 s25, s25, 40960"); a("  s_add_u32 s25, s25, s7")
    a("  s_lshl_b32 s24, s6, 3"); a("  s_add_u32 s24, s24, s4"); a("  s_mul_i32 s24, s24, 245760"); a("  s_add_u32 s24, s24, s25")
    a("  s_mul_i32 s26, s4, 245760"); a("  s_add_u32 s26, s26, s25")
    a("  s_mul_i32 s7, s6, 10240"); a("  s_add_u32 s26, s26, s7")
    a("  v_lshrrev_b32 v3, 4, v1"); a("  v_and_b32 v8, 15, v1"); a("  v_mul_u32_u24 v3, 1280, v3"); a("  v_lshl_add_u32 v8, v8, 4, v3")
    a("  s_and_b32 s27, s5, 15"); a("  s_mul_i32 s27, s27, 122880"); a("  s_mul_i32 s25, s4, 384"); a("  s_add_u32 s27, s27, s25")
    a("  s_barrier")
    stamp(1)
    def pace(n): a(f"  s_waitcnt vmcnt({n-1})")
    a("  s_mul_i32 s25, s6, 24576"); a("  s_add_u32 s25, s25, s27")
    a("  s_mul_i32 s31, s6, 3072"); a(f"  s_add_u32 s31, s31, {GB}")
    for t in range(3):
        a("  s_mov_b32 m0, s31")
        pace(NW)
        a(f"  buffer_load_dwordx4 v15, s[20:23], s25 offen {pol} lds")
        a("  s_add_u32 s25, s25, 128"); a("  s_add_u32 s31, s31, 1024")
    a("  s_cmp_eq_u32 s6, 3")
    a("  s_cbranch_scc1 L_nogu")
    a("  s_lshl_b32 s25, s6, 7"); a("  s_add_u32 s25, s25, s27"); a("  s_add_u32 s25, s25, 98304")
    a("  s_lshl_b32 s31, s6, 10"); a(f"  s_add_u32 s31, s31, {GB+12288}")
    a("  s_mov_b32 m0, s31")
    pace(NW)
    a(f"  buffer_load_dwordx4 v15, s[20:23], s25 offen {pol} lds")
    a("L_nogu:")
    a("  s_cmp_ge_u32 s5, 30")
    a("  s_cbranch_scc1 L_now")
    a("  s_lshl_b32 s31, s6, 11"); a(f"  s_add_u32 s31, s31, {WB}")
    for n in range(2):
        a("  s_mov_b32 m0, s31")
        pace(NW)
        a(f"  buffer_load_dwordx4 v8, s[16:19], s26 offen {pol} lds")
        a("  s_add_u32 s26, s26, 5120"); a("  s_add_u32 s31, s31, 1024")
    a("  s_lshl_b32 s31, s6, 13"); a(f"  s_add_u32 s31, s31, {WB+8192}")
    for n in range(8):
        a("  s_mov_b32 m0, s31")
        pace(NW)
        a(f"  buffer_load_dwordx4 v8, s[12:15], s24 offen {pol} lds")
        if n < 7: a("  s_add_u32 s24, s24, 5120"); a("  s_add_u32 s31, s31, 1024")
    a("L_now:")
    stamp(2)

    SMALL = 393216; BIG = SMALL + 7*HEADB
    def issue(k, cross):
        t = k % 3; r = RING + 4*(k % R)
        a(f"  buffer_load_dwordx4 v[{r}:{r+3}], v2, s[8:11], s28 offen offset:{128*t} {pol}")
        if t == 2:
            if (k // 3) % 8 == 7: cross()
            else: a(f"  s_add_u32 s28, s28, {SMALL}")
    for k in range(LEAD):
        pace(N)
        issue(k, None)
    stamp(3)
    a("  s_mov_b32 s30, 0")
    a("L_k:")
    a("  s_and_b32 s31, s30, 3")
    a("  s_cbranch_scc1 L_k_body")
    a("  s_lshr_b32 s31, s30, 2")
    a("  s_add_u32 s31, s31, 1")
    def rq():
        for t in range(3): a(f"  ds_read_b128 v[{QF+4*t}:{QF+4*t+3}], v110 offset:{QB+128*t}")
    lds_wait(13, FL+F_Q, "s31", 3, extra=rq)
    a("  v_add_u32 v110, 384, v110")
    if stamps:
        a("  s_cmp_eq_u32 s30, 0"); a("  s_cbranch_scc0 L_k_body"); stamp(4)
    a("L_k_body:")
    def crossK():
        a("  s_and_b32 s31, s30, 3")
        a("  s_cmp_eq_u32 s31, 3")
        a(f"  s_cselect_b32 s31, {BIG}, s77")
        a("  s_add_u32 s28, s28, s31")
        a("  s_cmp_eq_u32 s30, 15")
        a("  s_cselect_b32 s28, s29, s28")
        a(f"  s_cselect_b32 s8, s{PV}, s8")
        a(f"  s_cselect_b32 s9, s{PV+1}, s9")
    a(f"  s_mov_b32 s77, {SMALL}")
    for k in range(24):
        t = k % 3; i = k // 3; r = RING + 4*(k % R)
        pace(N)
        issue(k + LEAD, crossK)
        if t == 0: a(f"  v_mov_b32 v{KA}, 0")
        for e in range(4): a(f"  v_dot2c_f32_bf16 v{KA}, v{r+e}, v{QF+4*t+e}")
        if t == 2:
            dppadd("v_add_f32", KA, "quad_perm:[1,0,3,2]")
            dppadd("v_add_f32", KA, "quad_perm:[2,3,0,1]")
            dppadd("v_add_f32", KA, "row_half_mirror")
            a(f"  v_cndmask_b32 v{KC}, v{KC}, v{KA}, s[{60+2*i}:{61+2*i}]")
    a(f"  ds_write_b32 v108, v{KC}")
    a("  s_mov_b64 exec, 1")
    a(f"  ds_add_u32 v13, v113 offset:{FL+F_G}")
    a("  s_add_u32 s30, s30, 1")
    a("  s_and_b32 s31, s30, 3")
    a("  s_cbranch_scc1 L_k_next")
    a(f"  ds_add_u32 v112, v113 offset:{FL+F_K}")
    a("  v_add_u32 v112, 4, v112")
    a("L_k_next:")
    a("  s_mov_b64 exec, -1")
    a("  v_add_u32 v108, 32, v108")
    a("  s_cmp_lt_u32 s30, 16")
    a("  s_cbranch_scc1 L_k")
    stamp(5)
    a("  s_mov_b32 s30, 0")
    a("  v_mov_b32 v112, 0")
    lds_wait(13, FL+F_P, 1, 3, extra=lambda: a(f"  ds_read_b128 v[{PA}:{PA+3}], v109"))
    def crossV():
        a("  s_and_b32 s31, s30, 3")
        a("  s_cmp_eq_u32 s31, 3")
        a(f"  s_cselect_b32 s31, {BIG}, s77")
        a("  s_add_u32 s28, s28, s31")
    def vstep(k):
        t = k % 3; i = k // 3; r = RING + 4*(k % R)
        if t == 0:
            if i in (0, 4): a("  s_waitcnt lgkmcnt(0)")
            p = (PA if i < 4 else PB) + (i & 3)
            for e in range(4): a(f"  v_and_b32 v{AOP+e}, v{p}, v{VM+e}")
            if i == 0: a(f"  ds_read_b128 v[{PB}:{PB+3}], v109 offset:16")
            if i == 4: a(f"  ds_read_b128 v[{PA}:{PA+3}], v109 offset:32")
        c = f"v[{ACC+4*t}:{ACC+4*t+3}]"
        a(f"  v_mfma_f32_16x16x32_bf16 {c}, v[{AOP}:{AOP+3}], v[{r}:{r+3}], {c}")
    def vflush():
        a("  s_mov_b64 exec, s[34:35]")
        for t in range(3): a(f"  ds_write_b128 v111, v[{ACC+4*t}:{ACC+4*t+3}] offset:{256*t}")
        a("  s_mov_b64 exec, 1")
        a(f"  ds_add_u32 v112, v113 offset:{FL+F_V}")
        a("  s_mov_b64 exec, -1")
    a("L_v:")
    a("  s_and_b32 s31, s30, 3")
    a("  s_cbranch_scc1 L_v_body")
    a("  s_lshr_b32 s31, s30, 2")
    a("  s_add_u32 s31, s31, 2")
    a("  s_min_u32 s31, s31, 4")
    lds_wait(13, FL+F_P, "s31", 3)
    for k in range(12): a(f"  v_mov_b32 v{ACC+k}, 0")
    a("L_v_body:")
    for k in range(24):
        pace(N)
        issue(k + LEAD, crossV)
        vstep(k)
    a("  v_add_u32 v109, 32, v109")
    a("  s_mov_b64 exec, 1")
    a(f"  ds_add_u32 v13, v113 offset:{FL+F_G}")
    a("  s_mov_b64 exec, -1")
    a("  s_add_u32 s30, s30, 1")
    a("  s_and_b32 s31, s30, 3")
    a("  s_cbranch_scc1 L_v_next")
    vflush()
    a("  s_waitcnt lgkmcnt(0)")
    a("  v_add_u32 v112, 4, v112")
    a("  v_add_u32 v111, 6144, v111")
    a("L_v_next:")
    a("  s_cmp_lt_u32 s30, 15")
    a("  s_cbranch_scc1 L_v")
    for k in range(24):
        if k + LEAD < 24:
            pace(N2)
            issue(k + LEAD, lambda: None)
        else:
            a(f"  s_waitcnt vmcnt({23-k})")
        vstep(k)
    stamp(6)
    vflush()
    a("  s_waitcnt lgkmcnt(0)")
    stamp(7)
    stamp_flush()
    a("L_end:")
    a("  s_endpgm")
    a('.section .rodata,"a"')
    a(".p2align 6")
    a(f".amdhsa_kernel {NAME}")
    a("  .amdhsa_next_free_vgpr 168")
    a("  .amdhsa_next_free_sgpr 96")
    a("  .amdhsa_accum_offset 168")
    a("  .amdhsa_group_segment_fixed_size 0")
    a("  .amdhsa_kernarg_size 96")
    a("  .amdhsa_user_sgpr_count 2")
    a("  .amdhsa_user_sgpr_kernarg_segment_ptr 1")
    a("  .amdhsa_system_sgpr_workgroup_id_x 1")
    a("  .amdhsa_float_denorm_mode_32 3")
    a(".end_amdhsa_kernel")
    return a.fix()

if __name__ == "__main__":
    import json
    kw = json.loads(sys.argv[2]) if len(sys.argv) > 2 else {}
    open(sys.argv[1], "w").write(gen(**kw))
```

```python
import sys, struct
from asmlib import Asm

NAME = "parallel_sum__mha_block_cached__glu_gated_reglu__decode_kernel"
HEADER = open("parallel_sum__mha_block_cached__glu_gated_reglu__decode.s.ref").read().split("; Override launch")[0]

def f32(x): return "0x%08x" % struct.unpack("<I", struct.pack("<f", x))[0]

FL, QB, XN, QS, SB, OB, WB, GB, LDS_END = 0, 256, 2048, 4608, 6144, 22528, 53248, 94208, 109568
F_Q, F_P, F_G, F_K, F_V = 0, 4, 8, 16, 32
E3, E1, E4, E5, WS_END = 0x1000, 0x10000, 0x80000, 0x280000, 0x300000
RS = 1536
STAMP = 0x500000
HEADB = 12582912
KVB = 402653184

def gen(N=5, NW=5, N2=11, LEAD=11, stamps=False, prefetch=True, pol="nt", hs="sc1", sleepg=1, bar_at=30, delay=8, sleepb=32, sleepq=4, q0pre=0, qdelay=4, dbg='', hl=None, h1=None, sleepv=1, gl=None, gl1=None, gq=None, g3=None, g5=None, xp='', pfp='', loc=True, dbuf=True, delay5=8, tlb=0, tlbj=31):
    if hl is None: hl = hs
    if h1 is None: h1 = hs
    a = Asm()
    R = 12
    assert N <= LEAD < R and N2 <= LEAD
    a(HEADER.rstrip("\n"))
    a("; Override launch geometry by editing the next line (default: block=256,")
    a(f"; @launch grid=(256,1,1) block=(320,1,1) lds={LDS_END}")
    a('.amdgcn_target "amdgcn-amd-amdhsa--gfx950"')
    a(".text")
    a(f".globl {NAME}")
    a(".p2align 8")
    a(f".type {NAME},@function")
    a(f"{NAME}:")
    uid = [0]
    def lab(p):
        uid[0] += 1; return f"L_{p}_{uid[0]}"
    def srd(d, p, n):
        a(f"  s_mov_b32 s{d}, s{p}"); a(f"  s_mov_b32 s{d+1}, s{p+1}")
        a(f"  s_mov_b32 s{d+2}, {n}"); a(f"  s_mov_b32 s{d+3}, 0x20000")
    PX, PK, PV, PWQ, PWO, PWG, PWU, PWD, POUT, PWS = 36, 38, 40, 42, 44, 48, 50, 52, 54, 58
    nstamp = [0]
    def stamp(idx):
        if stamps:
            a("  s_memrealtime s[78:79]"); a("  s_waitcnt lgkmcnt(0)"); a(f"  s_mov_b32 s{80+idx}, s78")
    def stamp_flush():
        if stamps:
            srd(24, PWS, 0x1000000)
            a("  s_mov_b64 exec, -1")
            a("  s_mul_i32 s76, s2, 5"); a("  s_add_u32 s76, s76, s3"); a("  s_lshl_b32 s76, s76, 6"); a(f"  s_add_u32 s76, s76, {STAMP}")
            a("  s_getreg_b32 s95, hwreg(20)")
            for g in range(4):
                for k in range(4): a(f"  v_mov_b32 v{16+4*g+k}, s{80+4*g+k}")
            a("  v_mov_b32 v15, 0")
            a("  s_mov_b64 exec, 1")
            for g in range(4): a(f"  buffer_store_dwordx4 v[{16+4*g}:{19+4*g}], v15, s[24:27], s76 offen offset:{16*g}")
            a("  s_waitcnt vmcnt(0)")

    if stamps:
        a("  s_memrealtime s[80:81]")
    a("  s_cmp_ge_u32 s2, 256")
    a("  s_cbranch_scc1 L_end")
    a("  s_load_dwordx16 s[36:51], s[0:1], 0")
    a("  s_load_dwordx8 s[52:59], s[0:1], 64")
    if stamps:
        for k in range(82, 96): a(f"  s_mov_b32 s{k}, 0")
    a("  v_lshrrev_b32 v3, 6, v0")
    a("  v_and_b32 v1, 63, v0                 ; lane")
    a("  v_readfirstlane_b32 s3, v3           ; wave")
    a("  s_and_b32 s4, s2, 7                  ; x")
    a("  s_lshr_b32 s5, s2, 3                 ; j")
    a("  v_lshrrev_b32 v9, 3, v1")
    a("  v_and_b32 v10, 7, v1")
    VM = 4
    a("  v_and_b32 v3, 1, v10")
    a("  v_lshlrev_b32 v3, 4, v3")
    a("  v_mov_b32 v8, 0xffff")
    a("  v_lshlrev_b32 v8, v3, v8")
    a("  v_lshrrev_b32 v3, 1, v10")
    for k in range(4):
        a(f"  v_cmp_eq_u32 vcc, {k}, v3")
        a(f"  v_cndmask_b32 v{VM+k}, 0, v8, vcc")
    a("  v_lshrrev_b32 v3, 5, v1")
    a("  v_mul_u32_u24 v11, 768, v3")
    a("  v_lshl_add_u32 v11, v10, 5, v11")
    a("  v_and_b32 v3, 16, v1")
    a("  v_add_u32 v11, v11, v3")
    a("  v_lshlrev_b32 v12, 4, v1             ; lane*16")
    a("  s_mov_b32 s34, 0x00ff00ff")
    a("  s_mov_b32 s35, 0xff00ff00")
    a("  s_cmp_eq_u32 s3, 0")
    a("  s_cbranch_scc0 L_stream")

    def lds_wait(vaddr, off, val, vt, extra=None, sleep=1):
        L = lab("w"); D = lab("d")
        a("  s_mov_b32 s33, 0x100000")
        a(f"{L}:")
        a(f"  ds_read_b32 v{vt}, v{vaddr} offset:{off}")
        if extra: extra()
        a("  s_waitcnt lgkmcnt(0)")
        a(f"  v_readfirstlane_b32 s32, v{vt}")
        a(f"  s_cmp_ge_u32 s32, {val}")
        a(f"  s_cbranch_scc1 {D}")
        a(f"  s_sleep {sleep}")
        a("  s_sub_u32 s33, s33, 1")
        a(f"  s_cbranch_scc0 {L}")
        a(f"{D}:")
    def dppadd(op, d, ctrl):
        a(f"  {op}_dpp v{d}, v{d}, v{d} {ctrl} row_mask:0xf bank_mask:0xf")
    def swapred(op, regs, tmp, which):
        for i, d in enumerate(regs): a(f"  v_mov_b32 v{tmp+i}, v{d}")
        for i, d in enumerate(regs): a(f"  v_permlane{which}_swap_b32 v{d}, v{tmp+i}")
        if op:
            for i, d in enumerate(regs): a(f"  {op} v{d}, v{d}, v{tmp+i}")
    def allreduce(op, regs, tmp, upto=64):
        for ctrl in ("quad_perm:[1,0,3,2]", "quad_perm:[2,3,0,1]", "row_half_mirror", "row_mirror"):
            for d in regs: dppadd(op, d, ctrl)
        swapred(op, regs, tmp, 16)
        if upto == 64: swapred(op, regs, tmp, 32)
    def parreduce(regs, tmp):
        for ctrl in ("quad_perm:[2,3,0,1]", "row_ror:4", "row_ror:8"):
            for d in regs: dppadd("v_add_f32", d, ctrl)
        swapred("v_add_f32", regs, tmp, 16)

    TAG = 6
    WQ = 16
    XF = 136
    T = 146
    a("  v_lshlrev_b32 v13, 2, v1             ; lane*4")
    a("  v_mul_u32_u24 v14, 12288, v9")
    a("  v_lshl_add_u32 v14, v10, 4, v14")
    a("  s_and_b32 s28, s5, 7")
    a("  s_mul_i32 s29, s28, 80")
    a("  s_mul_i32 s28, s29, 12288")
    a("  s_and_b32 s30, s5, 24")
    a("  s_add_u32 s30, s30, s4")
    a("  s_mul_i32 s30, s30, 384")
    a("  s_add_u32 s28, s28, s30")
    a("  s_waitcnt lgkmcnt(0)")
    a(f"  s_load_dword s{TAG}, s[{PWS}:{PWS+1}], 0")
    srd(8, PX, 1280); srd(12, PWQ, 7864320); srd(16, PWS, WS_END)
    for k in range(5): a(f"  buffer_load_dword v{T+k}, v13, s[8:11], 0 offen offset:{256*k} {xp}")
    n = 0
    for i in range(10):
        for t in range(3):
            if n == bar_at: a("  s_barrier")
            r = WQ + 12*i + 4*t
            a(f"  buffer_load_dwordx4 v[{r}:{r+3}], v14, s[12:15], s28 offen offset:{128*t} {pol}")
            n += 1
        if i < 9: a("  s_add_u32 s28, s28, 98304")
    if bar_at >= 30: a("  s_barrier")
    stamp(1)
    a(f"  s_mov_b32 s7, {f32(1/640)}")
    a("  s_waitcnt vmcnt(30)")
    for k in range(5):
        a(f"  v_lshlrev_b32 v{XF+2*k}, 16, v{T+k}")
        a(f"  v_and_b32 v{XF+2*k+1}, 0xffff0000, v{T+k}")
    S = T+5
    a(f"  v_add_f32 v{S}, v{XF}, v{XF+1}")
    for k in range(2, 10): a(f"  v_add_f32 v{S}, v{S}, v{XF+k}")
    allreduce("v_add_f32", [S], T+6)
    a(f"  v_mul_f32 v{S}, s7, v{S}             ; mean")
    Q = T+7
    a(f"  v_sub_f32 v{T}, v{XF}, v{S}")
    a(f"  v_mul_f32 v{Q}, v{T}, v{T}")
    for k in range(1, 10):
        a(f"  v_sub_f32 v{T+(k&1)}, v{XF+k}, v{S}")
        a(f"  v_fmac_f32 v{Q}, v{T+(k&1)}, v{T+(k&1)}")
    allreduce("v_add_f32", [Q], T+6)
    a(f"  v_mul_f32 v{Q}, s7, v{Q}             ; var")
    a(f"  v_cvt_pk_bf16_f32 v{T}, v{S}, v{Q}")
    a(f"  v_lshlrev_b32 v{S}, 16, v{T}         ; bf16(mean)")
    a(f"  v_and_b32 v{Q}, 0xffff0000, v{T}     ; bf16(var)")
    a(f"  v_add_f32 v{Q}, {f32(1e-5)}, v{Q}")
    a(f"  v_cvt_pk_bf16_f32 v{Q}, v{Q}, v{Q}")
    a(f"  v_lshlrev_b32 v{Q}, 16, v{Q}")
    a(f"  v_sqrt_f32 v{Q}, v{Q}")
    a(f"  v_cvt_pk_bf16_f32 v{Q}, v{Q}, v{Q}")
    a(f"  v_lshlrev_b32 v{Q}, 16, v{Q}")
    a(f"  v_rcp_f32 v{Q}, v{Q}")
    a(f"  v_lshlrev_b32 v15, 3, v1")
    for k in range(5):
        x0, x1 = XF+2*k, XF+2*k+1
        a(f"  v_sub_f32 v{x0}, v{x0}, v{S}")
        a(f"  v_sub_f32 v{x1}, v{x1}, v{S}")
        a(f"  v_cvt_pk_bf16_f32 v{x1}, v{x0}, v{x1}")
        a(f"  v_lshlrev_b32 v{x0}, 16, v{x1}")
        a(f"  v_and_b32 v{x1}, 0xffff0000, v{x1}")
        a(f"  v_mul_f32 v{x0}, v{x0}, v{Q}")
        a(f"  v_mul_f32 v{x1}, v{x1}, v{Q}")
        a(f"  v_cvt_pk_bf16_f32 v{x0}, v{x0}, v{x0}")
        a(f"  v_cvt_pk_bf16_f32 v{x1}, v{x1}, v{x1}")
        a(f"  ds_write_b64 v15, v[{x0}:{x1}] offset:{XN+512*k}")
    a(f"  v_add_u32 v15, s29, v9")
    a(f"  v_lshlrev_b32 v15, 2, v15")
    a(f"  v_add_u32 v15, {XN}, v15")
    a("  s_waitcnt lgkmcnt(0)")
    a(f"  s_add_u32 s{TAG}, s{TAG}, 0x9e3779b0")
    a(f"  s_and_b32 s{TAG}, s{TAG}, 0xfffffff0")
    a("  s_getreg_b32 s20, hwreg(20, 0, 4)")
    a(f"  s_or_b32 s20, s20, s{TAG}")
    for k in range(5): a(f"  ds_read2_b32 v[{XF+2*k}:{XF+2*k+1}], v15 offset0:{16*k} offset1:{16*k+8}")
    AC = T+2
    AO = T+14
    a("  s_waitcnt lgkmcnt(0)")
    stamp(2)
    for i in range(10):
        ao = AO + 4*(i & 1)
        for k in range(4): a(f"  v_and_b32 v{ao+k}, v{XF+i}, v{VM+k}")
        a(f"  s_waitcnt vmcnt({27-3*i})")
        for t in range(3):
            r = WQ + 12*i + 4*t
            c = f"v[{AC+4*t}:{AC+4*t+3}]"
            a(f"  v_mfma_f32_16x16x32_bf16 {c}, v[{ao}:{ao+3}], v[{r}:{r+3}], {c if i else 0}")
    a("  v_mul_u32_u24 v14, 12, v1            ; lane*12")
    a("  s_lshl_b32 s28, s4, 5")
    a("  s_add_u32 s28, s28, s5")
    a("  s_lshl_b32 s31, s28, 10")
    a(f"  s_add_u32 s30, s31, {E1}")
    a("  s_mov_b64 exec, s[34:35]")
    for t in range(3): a(f"  ds_write_b128 v11, v[{AC+4*t}:{AC+4*t+3}] offset:{QS+256*t}")
    a("  s_mov_b64 exec, -1")
    G = 16
    for k in range(3): a(f"  ds_read_b32 v{G+k}, v14 offset:{QS+4*k}")
    for k in range(3): a(f"  ds_read_b32 v{G+4+k}, v14 offset:{QS+768+4*k}")
    a(f"  v_mov_b32 v{G+3}, s20")
    a("  s_waitcnt lgkmcnt(0)")
    for k in range(3): a(f"  v_add_f32 v{G+k}, v{G+k}, v{G+4+k}")
    a(f"  buffer_store_dwordx4 v[{G}:{G+3}], v12, s[16:19], s30 offen {h1}")
    stamp(3)
    def touch():
        if tlbj is not None:
            a(f"  s_cmp_eq_u32 s5, {tlbj}")
            a("  s_cbranch_scc0 L_notouch")
        srd(24, PK, KVB)
        a("  v_and_b32 v2, 3, v9")
        a(f"  s_mov_b32 s29, {8*HEADB}")
        a("  v_mul_lo_u32 v2, s29, v2")
        a("  v_min_u32 v3, 5, v10")
        a("  v_lshl_add_u32 v2, v3, 21, v2")
        a(f"  s_mul_i32 s29, s4, {HEADB}")
        a("  s_lshl_b32 s30, s5, 7")
        a("  s_add_u32 s29, s29, s30")
        a("  s_mov_b32 exec_lo, 0x3f3f3f3f")
        a("  s_mov_b32 exec_hi, 0")
        a("  buffer_load_dword v24, v2, s[24:27], s29 offen nt")
        a(f"  s_mov_b32 s24, s{PV}"); a(f"  s_mov_b32 s25, s{PV+1}")
        a("  buffer_load_dword v25, v2, s[24:27], s29 offen nt")
        a("  s_mov_b64 exec, -1")
        a("L_notouch:")
    if tlb == 1: touch()

    def lstore(*txts):
        if not loc:
            for txt in txts: a(f"  {txt} {hl}")
            return
        X = lab("sx"); Y = lab("sy")
        a("  s_cmp_eq_u32 s0, 0")
        a(f"  s_cbranch_scc1 {X}")
        for txt in txts: a(f"  {txt} sc1")
        a(f"  s_branch {Y}")
        a(f"{X}:")
        for txt in txts: a(f"  {txt}")
        a(f"{Y}:")
    def progress_delay(n):
        a(f"  ds_read_b32 v3, v13 offset:{FL+F_G}")
        a("  s_waitcnt lgkmcnt(0)")
        a("  v_readfirstlane_b32 s77, v3")
        a(f"  s_add_u32 s77, s77, {n}")
        a("  s_min_u32 s77, s77, 120")
        lds_wait(13, FL+F_G, "s77", 3, sleep=8)
    def gather(nl, voff, soffs, dst, sleep=None, tail=False, lp=None, first=None, xid=False, tagreg=None, bsleep=None):
        L = lab("g"); D = lab("gd")
        a("  s_mov_b32 s33, 0x10000")
        if lp is None: lp = hs
        if first is not None:
            C = lab("gc")
            for i in range(nl):
                s, imm = soffs[i]
                a(f"  buffer_load_dwordx4 v[{dst+4*i}:{dst+4*i+3}], v{voff}, s[16:19], {s} offen offset:{imm} {first}")
            a(f"  s_branch {C}")
        a(f"{L}:")
        for i in range(nl):
            s, imm = soffs[i]
            a(f"  buffer_load_dwordx4 v[{dst+4*i}:{dst+4*i+3}], v{voff}, s[16:19], {s} offen offset:{imm} {lp}")
        if first is not None: a(f"{C}:")
        if nl == 1:
            a("  s_waitcnt vmcnt(0)")
            a(f"  v_cmp_ne_u32 vcc, {tagreg or 's%d' % TAG}, v{dst+3}")
        else:
            for i in range(nl):
                a(f"  s_waitcnt vmcnt({nl-1-i})")
                tg = "s20" if xid else (tagreg or f"s{TAG}")
                if i == 0: a(f"  v_xor_b32 v3, {tg}, v{dst+3}")
                else:
                    a(f"  v_xor_b32 v2, {tg}, v{dst+4*i+3}")
                    a(f"  v_or_b32 v3, v3, v2")
            a("  v_cmp_lt_u32 vcc, 15, v3" if xid else "  v_cmp_ne_u32 vcc, 0, v3")
        a("  s_and_b64 exec, exec, vcc")
        a(f"  s_cbranch_scc0 {D}")
        if tail:
            S = lab("gs")
            if sleepg: a(f"  s_sleep {sleepg}")
            a("  s_cmp_eq_u32 s30, 4")
            a(f"  s_cbranch_scc1 {S}")
            a(f"  s_sleep {bsleep or sleepb}")
            a(f"{S}:")
        else:
            a(f"  s_sleep {sleep}")
        a("  s_sub_u32 s33, s33, 1")
        a(f"  s_cbranch_scc0 {L}")
        a(f"{D}:")
        a("  s_mov_b64 exec, -1")

    G = 32
    a("  s_lshl_b32 s28, s4, 15")
    a(f"  s_add_u32 s28, s28, {E1}")
    a("  v_mul_u32_u24 v15, 6, v1")
    a("  v_mov_b32 v13, 0")
    a("  s_mov_b32 s30, 0")
    a("  s_mov_b32 s0, 0")
    if q0pre: a(f"  s_sleep {q0pre}")
    a("L_hq:")
    a("  s_add_u32 s29, s28, 4096")
    gather(8, 12, [("s28", 1024*i) for i in range(4)] + [("s29", 1024*i) for i in range(4)], G, sleep=sleepq, lp=gq, xid=True)
    a("  v_readfirstlane_b32 s29, v3")
    a("  s_or_b32 s0, s0, s29")
    for i in range(1, 8):
        for k in range(3): a(f"  v_add_f32 v{G+k}, v{G+k}, v{G+4*i+k}")
    a(f"  v_cvt_pk_bf16_f32 v{G}, v{G}, v{G+1}")
    a(f"  v_cvt_pk_bf16_f32 v{G+2}, v{G+2}, v{G+2}")
    a("  s_add_u32 s30, s30, 1")
    a("  v_mov_b32 v3, s30")
    a(f"  ds_write_b16 v15, v{G} offset:{QB}")
    a(f"  ds_write_b16_d16_hi v15, v{G} offset:{QB+2}")
    a(f"  ds_write_b16 v15, v{G+2} offset:{QB+4}")
    a(f"  ds_write_b32 v13, v3 offset:{FL+F_Q}")
    if stamps:
        a("  s_cmp_eq_u32 s30, 1"); a("  s_cbranch_scc0 L_nst4"); stamp(4); a("L_nst4:")
    if qdelay:
        a("  s_cmp_eq_u32 s30, 1"); a("  s_cbranch_scc0 L_hq_nd")
        if tlb == 2:
            touch(); a("  s_mov_b32 s30, 1")
        lds_wait(13, FL+F_G, qdelay, 3, sleep=8)
        a("L_hq_nd:")
    a("  v_add_u32 v15, 384, v15")
    a("  s_add_u32 s28, s28, 8192")
    a("  s_cmp_lt_u32 s30, 4")
    a("  s_waitcnt lgkmcnt(0)")
    a("  s_cbranch_scc1 L_hq")
    stamp(5)

    if 'noH' in dbg:
        a("  v_mov_b32 v3, 4")
        a(f"  ds_write_b32 v13, v3 offset:{FL+F_P}")
        a("  s_waitcnt lgkmcnt(0)")
        stamp_flush()
        a("  s_endpgm")
    SC = 16
    a("  v_lshlrev_b32 v15, 9, v9")
    a("  v_lshl_add_u32 v15, v10, 4, v15")
    a(f"  v_add_u32 v15, {SB}, v15")
    a("  v_and_b32 v2, 31, v1")
    a("  v_lshlrev_b32 v48, 4, v2             ; (lane&31)*16")
    a("  s_lshl_b32 s28, s4, 9")
    a(f"  s_add_u32 s28, s28, {E3}            ; E3 + x*512")
    a("  s_lshl_b32 s29, s5, 4")
    a("  v_mov_b32 v49, s29                   ; j*16")
    a(f"  s_mov_b32 s7, {f32(192**-0.5)}")
    a(f"  s_mov_b32 s21, {f32(1.4426950408889634)}")
    a("  s_mov_b32 s30, 0")
    a("  v_mov_b32 v50, 0                     ; 4*round")
    a("L_hk:")
    lds_wait(50, FL+F_K, 4, 3, sleep=8)
    for i in range(4): a(f"  ds_read_b128 v[{SC+4*i}:{SC+4*i+3}], v15 offset:{4096*i}")
    a("  s_waitcnt lgkmcnt(0)")
    for k in range(8):
        x0, x1 = SC+2*k, SC+2*k+1
        a(f"  v_cvt_pk_bf16_f32 v{x1}, v{x0}, v{x1}")
        a(f"  v_lshlrev_b32 v{x0}, 16, v{x1}")
        a(f"  v_and_b32 v{x1}, 0xffff0000, v{x1}")
        a(f"  v_mul_f32 v{x0}, s7, v{x0}")
        a(f"  v_mul_f32 v{x1}, s7, v{x1}")
        a(f"  v_cvt_pk_bf16_f32 v{x1}, v{x0}, v{x1}")
        a(f"  v_lshlrev_b32 v{x0}, 16, v{x1}")
        a(f"  v_and_b32 v{x1}, 0xffff0000, v{x1}")
    M = 52; Ls = 53
    a(f"  v_max_f32 v{M}, v{SC}, v{SC+1}")
    for k in range(1, 8): a(f"  v_max3_f32 v{M}, v{M}, v{SC+2*k}, v{SC+2*k+1}")
    allreduce("v_max_f32", [M], 56)
    for k in range(16):
        a(f"  v_sub_f32 v{32+k}, v{SC+k}, v{M}")
        a(f"  v_mul_f32 v{32+k}, s21, v{32+k}")
        a(f"  v_exp_f32 v{32+k}, v{32+k}")
    a(f"  v_add_f32 v{Ls}, v32, v33")
    for k in range(2, 16): a(f"  v_add_f32 v{Ls}, v{Ls}, v{32+k}")
    allreduce("v_add_f32", [Ls], 56)
    a(f"  v_mov_b32 v54, 0")
    a(f"  v_mov_b32 v55, s{TAG}")
    a("  s_mov_b64 exec, 1")
    lstore("buffer_store_dwordx4 v[52:55], v49, s[16:19], s28 offen")
    a("  s_mov_b64 exec, -1")
    if delay: progress_delay(delay)
    gather(1, 48, [("s28", 0)], 60, sleep=sleepb, lp=g3)
    a("  v_mov_b32 v64, v60")
    allreduce("v_max_f32", [64], 56, upto=32)
    a("  v_sub_f32 v60, v60, v64")
    a("  v_mul_f32 v60, s21, v60")
    a("  v_exp_f32 v60, v60")
    a("  v_mul_f32 v61, v61, v60")
    allreduce("v_add_f32", [61], 56, upto=32)
    a("  v_rcp_f32 v62, v61")
    a("  v_fma_f32 v63, -v61, v62, 1.0")
    a("  v_fma_f32 v62, v63, v62, v62            ; refined 1/L")
    for k in range(16):
        a(f"  v_sub_f32 v{32+k}, v{SC+k}, v64")
        a(f"  v_mul_f32 v{32+k}, s21, v{32+k}")
        a(f"  v_exp_f32 v{32+k}, v{32+k}")
    for k in range(16):
        a(f"  v_mul_f32 v{32+k}, v{32+k}, v62")
        a(f"  v_cvt_pk_bf16_f32 v{32+k}, v{32+k}, v{32+k}")
    a("  s_add_u32 s30, s30, 1")
    a("  v_mov_b32 v3, s30")
    for i in range(4): a(f"  ds_write_b128 v15, v[{32+4*i}:{35+4*i}] offset:{4096*i}")
    a(f"  ds_write_b32 v13, v3 offset:{FL+F_P}")
    a("  s_waitcnt lgkmcnt(0)")
    a("  v_add_u32 v15, 128, v15")
    a("  v_add_u32 v50, 4, v50")
    a("  s_add_u32 s28, s28, 4096")
    a("  s_cmp_lt_u32 s30, 4")
    a("  s_cbranch_scc1 L_hk")
    stamp(6)

    if 'noC' in dbg:
        stamp_flush()
        a("  s_endpgm")
    a("  s_and_b32 s28, s5, 15")
    a("  s_mul_i32 s28, s28, 40")
    a("  v_add_u32 v15, s28, v9")
    a("  v_lshlrev_b32 v15, 2, v15")
    a(f"  v_add_u32 v15, {XN}, v15")
    for k in range(5): a(f"  ds_read_b32 v{XF+k}, v15 offset:{32*k}")
    a(f"  v_add_u32 v15, {GB}, v12")
    for q in range(15): a(f"  ds_read_b128 v[{16+4*q}:{19+4*q}], v15 offset:{1024*q}")
    a("  s_waitcnt lgkmcnt(0)")
    for i in range(5):
        ao = AO + 4*(i & 1)
        for k in range(4): a(f"  v_and_b32 v{ao+k}, v{XF+i}, v{VM+k}")
        for t in range(3):
            r = 16 + 12*i + 4*t
            cb = 80 + 12*(i & 3) + 4*t
            c = f"v[{cb}:{cb+3}]"
            a(f"  v_mfma_f32_16x16x32_bf16 {c}, v[{ao}:{ao+3}], v[{r}:{r+3}], {c if i == 4 else 0}")
    a("  s_mov_b64 exec, s[34:35]")
    for i in (1, 2, 3, 0):
        for t in range(3):
            cb = 80 + 12*i + 4*t
            a(f"  ds_write_b128 v11, v[{cb}:{cb+3}] offset:{OB+1536*i+256*t}")
    a("  s_mov_b64 exec, -1")

    Y = 136
    WR = 16
    WP = 48
    O = 80
    a(f"  v_add_u32 v14, {OB}, v12")
    a("  v_lshlrev_b32 v15, 2, v1")
    a(f"  v_add_u32 v15, {WB}, v15")
    a("  v_lshlrev_b32 v145, 5, v1            ; lane*32")
    a("  v_lshrrev_b32 v2, 4, v1")
    a("  v_and_b32 v3, 15, v1")
    a(f"  v_mul_u32_u24 v146, {RS}, v2")
    a("  v_lshl_add_u32 v146, v3, 4, v146")
    a("  v_lshrrev_b32 v2, 2, v1")
    a("  v_and_b32 v3, 3, v1")
    a("  v_lshlrev_b32 v147, 10, v2")
    a("  v_lshl_add_u32 v147, v3, 4, v147")
    a("  s_lshl_b32 s22, s2, 4")
    a("  v_lshl_add_u32 v148, v3, 2, s22")
    a(f"  buffer_load_dword v149, v148, s[8:11], 0 offen {xp}")
    srd(12, POUT, 1280)
    a("  s_mul_hi_u32 s24, s5, 0x33333334     ; jr")
    a("  s_mul_i32 s25, s24, 5")
    a("  s_sub_u32 s25, s5, s25               ; jc")
    a("  s_min_u32 s24, s24, 5")
    a("  s_lshl_b32 s28, s4, 5")
    a("  s_add_u32 s31, s28, s5")
    a(f"  s_mul_i32 s31, s31, {RS}")
    a(f"  s_add_u32 s31, s31, {E4}")
    a(f"  s_mul_i32 s28, s28, {RS}")
    a("  s_lshl_b32 s29, s24, 8")
    a("  s_add_u32 s28, s28, s29")
    a(f"  s_add_u32 s28, s28, {E4}")
    a("  s_mul_i32 s23, s25, 48")
    a("  s_mul_i32 s29, s4, 6")
    a("  s_add_u32 s23, s23, s29")
    a("  s_add_u32 s23, s23, s24")
    a("  s_lshl_b32 s23, s23, 10")
    a(f"  s_add_u32 s23, s23, {E5}")
    a("  s_lshr_b32 s22, s2, 4")
    a("  s_mul_i32 s22, s22, 49152")
    a("  s_and_b32 s29, s2, 15")
    a("  s_lshl_b32 s29, s29, 6")
    a("  s_add_u32 s22, s22, s29")
    a(f"  s_add_u32 s22, s22, {E5}")
    a("  s_mov_b32 s20, 0x05040100")
    a("  s_mov_b32 s21, 0x07060302")
    a("  s_mov_b32 s30, 0")
    a("  v_mov_b32 v150, 0                    ; 4*it")
    for k in range(4): a(f"  v_mov_b32 v{Y+k}, 0")
    a("L_hc:")
    for q in range(16): a(f"  ds_read2st64_b32 v[{WR+2*q}:{WR+2*q+1}], v15 offset0:{2*q} offset1:{2*q+1}")
    a(f"  s_or_b32 s1, s{TAG}, s30")
    for i in range(8): a(f"  s_add_u32 s{60+i}, s28, {4*RS*i}")
    for i in range(3): a(f"  s_add_u32 s{68+i}, s22, {16384*i}")
    for r in (114, 115, 118, 119, 142, 143): a(f"  v_mov_b32 v{r}, s1")
    a("  s_waitcnt lgkmcnt(0)")
    for q in range(16):
        a(f"  v_perm_b32 v{WP+2*q}, v{WR+2*q+1}, v{WR+2*q}, s20")
        a(f"  v_perm_b32 v{WP+2*q+1}, v{WR+2*q+1}, v{WR+2*q}, s21")
    a("  s_cmp_eq_u32 s30, 0")
    a("  s_cbranch_scc1 L_hc_go")
    lds_wait(150, FL+F_V-4, 4, 3, sleep=sleepv)
    a("L_hc_go:")
    if stamps:
        a("  s_cmp_eq_u32 s30, 4"); a("  s_cbranch_scc0 L_nst7"); stamp(7); a("L_nst7:")
    a("  s_mov_b32 exec_hi, 0xffff")
    for p in range(8): a(f"  ds_read_b128 v[{O+4*p}:{O+4*p+3}], v14 offset:{768*p}")
    def pk(d, x, y): a(f"  v_pk_add_f32 v[{d}:{d+1}], v[{x}:{x+1}], v[{y}:{y+1}]")
    for p in range(4):
        a(f"  s_waitcnt lgkmcnt({6-2*p})")
        for h in (0, 2): pk(O+8*p+h, O+8*p+h, O+8*p+4+h)
        if p & 1:
            for h in (0, 2): pk(O+8*(p-1)+h, O+8*(p-1)+h, O+8*p+h)
    pk(112, O, O+16); pk(116, O+2, O+18)
    if 'noS4' in dbg:
        a("  s_mov_b64 exec, -1"); a("  s_cmp_lg_u32 s30, 4"); a("  s_cbranch_scc1 L_hc_next"); a("  s_mov_b32 exec_hi, 0xffff")
    lstore("buffer_store_dwordx4 v[112:115], v145, s[16:19], s31 offen", "buffer_store_dwordx4 v[116:119], v145, s[16:19], s31 offen offset:16")
    a("  s_mov_b64 exec, -1")
    if delay:
        a("  s_cmp_eq_u32 s30, 4"); a("  s_cbranch_scc1 L_hc_nd1")
        progress_delay(delay)
        a("L_hc_nd1:")
    gather(8, 146, [(f"s{60+i}", 0) for i in range(8)], O, tail=True, lp=gl, tagreg="s1")
    if stamps:
        a("  s_cmp_eq_u32 s30, 4"); a("  s_cbranch_scc0 L_nst8"); stamp(8); a("L_nst8:")
    pk(O, O, O+4); pk(O+8, O+8, O+12); pk(O+16, O+16, O+20); pk(O+24, O+24, O+28)
    pk(O, O, O+8); pk(O+16, O+16, O+24)
    a("  s_cmp_eq_u32 s30, 0")
    a("  s_cbranch_scc1 L_hc_ffn")
    pk(O, O, O+16)
    swapred("v_add_f32", [O, O+1], O+4, 16)
    swapred("v_add_f32", [O, O+1], O+4, 32)
    a("L_hc_pack:")
    a(f"  v_cvt_pk_bf16_f32 v{O}, v{O}, v{O+1}")
    for g in range(16):
        for h in range(2):
            a(f"  v_dot2c_f32_bf16_dpp v{Y+2*(g&1)+h}, v{O}, v{WP+2*g+h} row_newbcast:{g} row_mask:0xf bank_mask:0xf")
    if 'noE5f' in dbg: a("  s_cmp_lg_u32 s30, 4")
    else: a("  s_and_b32 s29, s30, 3")
    a("  s_cbranch_scc1 L_hc_next")
    a("  s_cmp_ge_u32 s5, 30")
    a("  s_cbranch_scc1 L_hc_fin")
    pk(140, Y, Y+2)
    a(f"  buffer_store_dwordx4 v[140:143], v12, s[16:19], s23 offen {hs}")
    if stamps:
        a("  s_cmp_eq_u32 s30, 4"); a("  s_cbranch_scc0 L_nst9"); stamp(9); a("L_nst9:")
    a("  s_cmp_ge_u32 s2, 80")
    a("  s_cbranch_scc1 L_hc_fin")
    G = O
    a("  s_cmp_eq_u32 s30, 4"); a("  s_cbranch_scc1 L_hc_nd2")
    progress_delay(delay5)
    a("L_hc_nd2:")
    gather(3, 147, [(f"s{68+i}", 0) for i in range(3)], G, tail=True, lp=g5, tagreg="s1", bsleep=32)
    pk(G, G, G+4); pk(G, G, G+8)
    for ctrl in ("row_ror:4", "row_ror:8"):
        for d in (G, G+1): dppadd("v_add_f32", d, ctrl)
    swapred("v_add_f32", [G, G+1], G+4, 16)
    swapred("v_add_f32", [G, G+1], G+4, 32)
    a(f"  v_cvt_pk_bf16_f32 v{G}, v{G}, v{G+1}")
    a(f"  v_lshlrev_b32 v{G+4}, 16, v{G}")
    a(f"  v_and_b32 v{G+5}, 0xffff0000, v{G}")
    pk(G+4, G+4, 152)
    a(f"  v_cvt_pk_bf16_f32 v{G+2}, v{G+4}, v{G+5}")
    a(f"  v_lshlrev_b32 v{G+4}, 16, v{G+2}")
    a(f"  v_and_b32 v{G+5}, 0xffff0000, v{G+2}")
    pk(G+4, G+4, 154)
    a(f"  v_cvt_pk_bf16_f32 v{G+1}, v{G+4}, v{G+5}")
    a("  s_cmp_eq_u32 s30, 0")
    a("  s_cbranch_scc1 L_hc_keep")
    a("  s_mov_b64 exec, 15")
    a(f"  buffer_store_dword v{G+1}, v148, s[12:15], 0 offen")
    a("  s_cmp_eq_u32 s2, 0")
    a("  s_cbranch_scc0 L_hc_fin")
    a("  s_mov_b64 exec, 1")
    a(f"  v_mov_b32 v107, s{TAG}")
    a(f"  buffer_store_dword v107, v13, s[16:19], 0 offen")
    a("  s_branch L_hc_fin")
    a("L_hc_keep:")
    a(f"  v_lshlrev_b32 v154, 16, v{G}")
    a(f"  v_and_b32 v155, 0xffff0000, v{G}")
    a(f"  v_lshlrev_b32 v152, 16, v149        ; x pair")
    a(f"  v_and_b32 v153, 0xffff0000, v149")
    a("L_hc_fin:")
    a("  s_mov_b64 exec, -1")
    for k in range(4): a(f"  v_mov_b32 v{Y+k}, 0")
    a(f"  s_add_u32 s23, s23, {240*1024}")
    a(f"  s_add_u32 s22, s22, {240*1024}")
    a("L_hc_next:")
    a("  v_add_u32 v14, 6144, v14")
    a("  v_add_u32 v15, 8192, v15")
    a("  v_add_u32 v150, 4, v150")
    if dbuf:
        a("  s_bitcmp1_b32 s30, 0")
        a(f"  s_mov_b32 s29, {256*RS}")
        a(f"  s_cselect_b32 s29, {(-256*RS) & 0xffffffff}, s29")
        a("  s_add_u32 s31, s31, s29")
        a("  s_add_u32 s28, s28, s29")
    else:
        a(f"  s_add_u32 s31, s31, {256*RS}")
        a(f"  s_add_u32 s28, s28, {256*RS}")
    a("  s_add_u32 s30, s30, 1")
    a("  s_cmp_lt_u32 s30, 5")
    a("  s_cbranch_scc1 L_hc")
    stamp(10)
    stamp_flush()
    a("  s_endpgm")
    a("L_hc_ffn:")
    regs = [O, O+1, O+16, O+17]
    swapred("v_add_f32", regs, O+4, 16)
    swapred("v_add_f32", regs, O+4, 32)
    for k in range(2):
        a(f"  v_cvt_pk_bf16_f32 v{O+16+k}, v{O+k}, v{O+16+k}")
        a(f"  v_lshlrev_b32 v{O+k}, 16, v{O+16+k}")
        a(f"  v_and_b32 v{O+16+k}, 0xffff0000, v{O+16+k}")
        a(f"  v_cmp_lt_f32 vcc, 0, v{O+k}")
        a(f"  v_cndmask_b32 v{O+4}, 0, 1.0, vcc")
        a(f"  v_mul_f32 v{O+k}, v{O+k}, v{O+4}")
        a(f"  v_mul_f32 v{O+k}, v{O+k}, v{O+16+k}")
    a("  s_branch L_hc_pack")

    a(".p2align 6")
    a("L_stream:")
    RING = 16; QF = 64; KA = 76; KC = 77
    AOP = 84; PA = 88; PB = 92; ACC = 96
    a("  s_setprio 1")
    a("  s_sub_u32 s6, s3, 1                  ; w")
    a("  v_mov_b32 v13, 0")
    a("  v_lshlrev_b32 v3, 2, v1")
    a(f"  ds_write_b32 v3, v13 offset:{FL}")
    if prefetch:
        a("  s_cmp_eq_u32 s6, 0")
        a("  s_cbranch_scc0 L_nopf")
        a("  s_getpc_b64 s[24:25]")
        a("L_pc:")
        a(f"  s_sub_u32 s24, s24, L_pc-{NAME}")
        a("  s_subb_u32 s25, s25, 0")
        a("  v_lshlrev_b32 v3, 7, v1")
        a(f"  v_min_u32 v3, L_end-{NAME}, v3")
        a(f"  global_load_dword v14, v3, s[24:25] {pfp}")
        a("L_nopf:")
    a("  v_mul_u32_u24 v2, 384, v9")
    a("  v_lshl_add_u32 v2, v10, 4, v2")
    a("  v_mul_u32_u24 v15, 3072, v9")
    a("  v_lshl_add_u32 v15, v10, 4, v15")
    a("  s_lshl_b32 s7, s6, 12")
    a("  v_lshl_add_u32 v109, v9, 9, s7")
    a(f"  v_add_u32 v109, {SB}, v109")
    a("  v_lshl_add_u32 v108, v10, 2, v109")
    a("  v_lshlrev_b32 v110, 4, v10")
    a("  s_mul_i32 s7, s6, 1536")
    a(f"  s_add_u32 s7, s7, {OB+6144}")
    a("  v_add_u32 v111, s7, v11")
    a("  v_mov_b32 v112, 0                    ; 4*round")
    a("  v_mov_b32 v113, 1")
    for s in range(8):
        a(f"  s_mov_b32 s{60+2*s}, {hex(0x01010101 << s)}")
        a(f"  s_mov_b32 s{61+2*s}, {hex(0x01010101 << s)}")
    a(f"  s_mul_i32 s29, s4, {HEADB}")
    a("  s_lshl_b32 s7, s5, 2")
    a("  s_add_u32 s7, s7, s6")
    a("  s_mul_i32 s7, s7, 3072")
    a("  s_add_u32 s29, s29, s7")
    a("  s_mov_b32 s28, s29")
    a("  s_waitcnt lgkmcnt(0)")
    srd(8, PK, KVB)
    srd(12, PWO, 7864320); srd(16, PWD, 1966080)
    a("  s_cmp_lt_u32 s5, 16")
    a(f"  s_cselect_b32 s20, s{PWG}, s{PWU}")
    a(f"  s_cselect_b32 s21, s{PWG+1}, s{PWU+1}")
    a("  s_mov_b32 s22, 1966080"); a("  s_mov_b32 s23, 0x20000")
    a("  s_mul_hi_u32 s25, s5, 0x33333334     ; jr")
    a("  s_mul_i32 s7, s25, 5"); a("  s_sub_u32 s7, s5, s7"); a("  s_lshl_b32 s7, s7, 8")
    a("  s_mul_i32 s25, s25, 40960"); a("  s_add_u32 s25, s25, s7")
    a("  s_lshl_b32 s24, s6, 3"); a("  s_add_u32 s24, s24, s4"); a("  s_mul_i32 s24, s24, 245760"); a("  s_add_u32 s24, s24, s25")
    a("  s_mul_i32 s26, s4, 245760"); a("  s_add_u32 s26, s26, s25")
    a("  s_mul_i32 s7, s6, 10240"); a("  s_add_u32 s26, s26, s7")
    a("  v_lshrrev_b32 v3, 4, v1"); a("  v_and_b32 v8, 15, v1"); a("  v_mul_u32_u24 v3, 1280, v3"); a("  v_lshl_add_u32 v8, v8, 4, v3")
    a("  s_and_b32 s27, s5, 15"); a("  s_mul_i32 s27, s27, 122880"); a("  s_mul_i32 s25, s4, 384"); a("  s_add_u32 s27, s27, s25")
    a("  s_barrier")
    stamp(1)
    def pace(n): a(f"  s_waitcnt vmcnt({n-1})")
    a("  s_mul_i32 s25, s6, 24576"); a("  s_add_u32 s25, s25, s27")
    a("  s_mul_i32 s31, s6, 3072"); a(f"  s_add_u32 s31, s31, {GB}")
    for t in range(3):
        a("  s_mov_b32 m0, s31")
        pace(NW)
        a(f"  buffer_load_dwordx4 v15, s[20:23], s25 offen {pol} lds")
        a("  s_add_u32 s25, s25, 128"); a("  s_add_u32 s31, s31, 1024")
    a("  s_cmp_eq_u32 s6, 3")
    a("  s_cbranch_scc1 L_nogu")
    a("  s_lshl_b32 s25, s6, 7"); a("  s_add_u32 s25, s25, s27"); a("  s_add_u32 s25, s25, 98304")
    a("  s_lshl_b32 s31, s6, 10"); a(f"  s_add_u32 s31, s31, {GB+12288}")
    a("  s_mov_b32 m0, s31")
    pace(NW)
    a(f"  buffer_load_dwordx4 v15, s[20:23], s25 offen {pol} lds")
    a("L_nogu:")
    a("  s_cmp_ge_u32 s5, 30")
    a("  s_cbranch_scc1 L_now")
    a("  s_lshl_b32 s31, s6, 11"); a(f"  s_add_u32 s31, s31, {WB}")
    for n in range(2):
        a("  s_mov_b32 m0, s31")
        pace(NW)
        a(f"  buffer_load_dwordx4 v8, s[16:19], s26 offen {pol} lds")
        a("  s_add_u32 s26, s26, 5120"); a("  s_add_u32 s31, s31, 1024")
    a("  s_lshl_b32 s31, s6, 13"); a(f"  s_add_u32 s31, s31, {WB+8192}")
    for n in range(8):
        a("  s_mov_b32 m0, s31")
        pace(NW)
        a(f"  buffer_load_dwordx4 v8, s[12:15], s24 offen {pol} lds")
        if n < 7: a("  s_add_u32 s24, s24, 5120"); a("  s_add_u32 s31, s31, 1024")
    a("L_now:")
    stamp(2)

    SMALL = 393216; BIG = SMALL + 7*HEADB
    def issue(k, cross):
        t = k % 3; r = RING + 4*(k % R)
        a(f"  buffer_load_dwordx4 v[{r}:{r+3}], v2, s[8:11], s28 offen offset:{128*t} {pol}")
        if t == 2:
            if (k // 3) % 8 == 7: cross()
            else: a(f"  s_add_u32 s28, s28, {SMALL}")
    for k in range(LEAD):
        pace(N)
        issue(k, None)
    stamp(3)
    a("  s_mov_b32 s30, 0")
    a("L_k:")
    a("  s_and_b32 s31, s30, 3")
    a("  s_cbranch_scc1 L_k_body")
    a("  s_lshr_b32 s31, s30, 2")
    a("  s_add_u32 s31, s31, 1")
    def rq():
        for t in range(3): a(f"  ds_read_b128 v[{QF+4*t}:{QF+4*t+3}], v110 offset:{QB+128*t}")
    lds_wait(13, FL+F_Q, "s31", 3, extra=rq)
    a("  v_add_u32 v110, 384, v110")
    if stamps:
        a("  s_cmp_eq_u32 s30, 0"); a("  s_cbranch_scc0 L_k_body"); stamp(4)
    a("L_k_body:")
    def crossK():
        a("  s_and_b32 s31, s30, 3")
        a("  s_cmp_eq_u32 s31, 3")
        a(f"  s_cselect_b32 s31, {BIG}, s77")
        a("  s_add_u32 s28, s28, s31")
        a("  s_cmp_eq_u32 s30, 15")
        a("  s_cselect_b32 s28, s29, s28")
        a(f"  s_cselect_b32 s8, s{PV}, s8")
        a(f"  s_cselect_b32 s9, s{PV+1}, s9")
    a(f"  s_mov_b32 s77, {SMALL}")
    for k in range(24):
        t = k % 3; i = k // 3; r = RING + 4*(k % R)
        pace(N)
        issue(k + LEAD, crossK)
        if t == 0: a(f"  v_mov_b32 v{KA}, 0")
        for e in range(4): a(f"  v_dot2c_f32_bf16 v{KA}, v{r+e}, v{QF+4*t+e}")
        if t == 2:
            dppadd("v_add_f32", KA, "quad_perm:[1,0,3,2]")
            dppadd("v_add_f32", KA, "quad_perm:[2,3,0,1]")
            dppadd("v_add_f32", KA, "row_half_mirror")
            a(f"  v_cndmask_b32 v{KC}, v{KC}, v{KA}, s[{60+2*i}:{61+2*i}]")
    a(f"  ds_write_b32 v108, v{KC}")
    a("  s_mov_b64 exec, 1")
    a(f"  ds_add_u32 v13, v113 offset:{FL+F_G}")
    a("  s_add_u32 s30, s30, 1")
    a("  s_and_b32 s31, s30, 3")
    a("  s_cbranch_scc1 L_k_next")
    a(f"  ds_add_u32 v112, v113 offset:{FL+F_K}")
    a("  v_add_u32 v112, 4, v112")
    a("L_k_next:")
    a("  s_mov_b64 exec, -1")
    a("  v_add_u32 v108, 32, v108")
    a("  s_cmp_lt_u32 s30, 16")
    a("  s_cbranch_scc1 L_k")
    stamp(5)
    a("  s_mov_b32 s30, 0")
    a("  v_mov_b32 v112, 0")
    lds_wait(13, FL+F_P, 1, 3, extra=lambda: a(f"  ds_read_b128 v[{PA}:{PA+3}], v109"))
    def crossV():
        a("  s_and_b32 s31, s30, 3")
        a("  s_cmp_eq_u32 s31, 3")
        a(f"  s_cselect_b32 s31, {BIG}, s77")
        a("  s_add_u32 s28, s28, s31")
    def vstep(k):
        t = k % 3; i = k // 3; r = RING + 4*(k % R)
        if t == 0:
            if i in (0, 4): a("  s_waitcnt lgkmcnt(0)")
            p = (PA if i < 4 else PB) + (i & 3)
            for e in range(4): a(f"  v_and_b32 v{AOP+e}, v{p}, v{VM+e}")
            if i == 0: a(f"  ds_read_b128 v[{PB}:{PB+3}], v109 offset:16")
            if i == 4: a(f"  ds_read_b128 v[{PA}:{PA+3}], v109 offset:32")
        c = f"v[{ACC+4*t}:{ACC+4*t+3}]"
        a(f"  v_mfma_f32_16x16x32_bf16 {c}, v[{AOP}:{AOP+3}], v[{r}:{r+3}], {c}")
    def vflush():
        a("  s_mov_b64 exec, s[34:35]")
        for t in range(3): a(f"  ds_write_b128 v111, v[{ACC+4*t}:{ACC+4*t+3}] offset:{256*t}")
        a("  s_mov_b64 exec, 1")
        a(f"  ds_add_u32 v112, v113 offset:{FL+F_V}")
        a("  s_mov_b64 exec, -1")
    a("L_v:")
    a("  s_and_b32 s31, s30, 3")
    a("  s_cbranch_scc1 L_v_body")
    a("  s_lshr_b32 s31, s30, 2")
    a("  s_add_u32 s31, s31, 2")
    a("  s_min_u32 s31, s31, 4")
    lds_wait(13, FL+F_P, "s31", 3)
    for k in range(12): a(f"  v_mov_b32 v{ACC+k}, 0")
    a("L_v_body:")
    for k in range(24):
        pace(N)
        issue(k + LEAD, crossV)
        vstep(k)
    a("  v_add_u32 v109, 32, v109")
    a("  s_mov_b64 exec, 1")
    a(f"  ds_add_u32 v13, v113 offset:{FL+F_G}")
    a("  s_mov_b64 exec, -1")
    a("  s_add_u32 s30, s30, 1")
    a("  s_and_b32 s31, s30, 3")
    a("  s_cbranch_scc1 L_v_next")
    vflush()
    a("  s_waitcnt lgkmcnt(0)")
    a("  v_add_u32 v112, 4, v112")
    a("  v_add_u32 v111, 6144, v111")
    a("L_v_next:")
    a("  s_cmp_lt_u32 s30, 15")
    a("  s_cbranch_scc1 L_v")
    for k in range(24):
        if k + LEAD < 24:
            pace(N2)
            issue(k + LEAD, lambda: None)
        else:
            a(f"  s_waitcnt vmcnt({23-k})")
        vstep(k)
    stamp(6)
    vflush()
    a("  s_waitcnt lgkmcnt(0)")
    stamp(7)
    stamp_flush()
    a("L_end:")
    a("  s_endpgm")
    a('.section .rodata,"a"')
    a(".p2align 6")
    a(f".amdhsa_kernel {NAME}")
    a("  .amdhsa_next_free_vgpr 168")
    a("  .amdhsa_next_free_sgpr 96")
    a("  .amdhsa_accum_offset 168")
    a("  .amdhsa_group_segment_fixed_size 0")
    a("  .amdhsa_kernarg_size 96")
    a("  .amdhsa_user_sgpr_count 2")
    a("  .amdhsa_user_sgpr_kernarg_segment_ptr 1")
    a("  .amdhsa_system_sgpr_workgroup_id_x 1")
    a("  .amdhsa_float_denorm_mode_32 3")
    a(".end_amdhsa_kernel")
    return a.fix()

if __name__ == "__main__":
    import json
    kw = json.loads(sys.argv[2]) if len(sys.argv) > 2 else {}
    open(sys.argv[1], "w").write(gen(**kw))
```

```python
import sys, struct
from asmlib import Asm

NAME = "parallel_sum__mha_block_cached__glu_gated_reglu__decode_kernel"
HEADER = open("parallel_sum__mha_block_cached__glu_gated_reglu__decode.s.ref").read().split("; Override launch")[0]

def f32(x): return "0x%08x" % struct.unpack("<I", struct.pack("<f", x))[0]

FL, QB, XN, QS, SB, OB, WB, GB, PG, LDS_END = 0, 256, 2048, 4608, 6144, 22528, 53248, 94208, 109568, 110592
F_Q, F_P, F_G, F_M, F_K, F_V = 0, 4, 8, 12, 16, 32
E3, E1, E4, E5, WS_END = 0x1000, 0x10000, 0x80000, 0x280000, 0x300000
CT = 0x6000
CG = 0x60000
RS = 1536
STAMP = 0x500000
HEADB = 12582912
KVB = 402653184

def gen(N=5, NW=5, N2=11, LEAD=11, stamps=False, prefetch=True, pol="nt", hs="sc1", sleepg=1, bar_at=30, delay=8, sleepb=32, sleepq=4, q0pre=0, qdelay=4, dbg='', hl=None, h1=None, sleepv=1, gl=None, gl1=None, gq=None, g3=None, g5=None, xp='', pfp='', loc=True, dbuf=True, delay5=8, tlb=0, tlbj=31, ctl=0, NB=None, thr=-3, csleep=24, par=0, gthr=0, gper=1, gsh=2, gcl='sc1', gstart=0, N2B=None):
    if NB is None: NB = N+1
    NWV = 6 if ctl else 5
    if hl is None: hl = hs
    if h1 is None: h1 = hs
    a = Asm()
    R = 12
    assert N <= LEAD < R and N2 <= LEAD
    a(HEADER.rstrip("\n"))
    a("; Override launch geometry by editing the next line (default: block=256,")
    a(f"; @launch grid=(256,1,1) block=({64*NWV},1,1) lds={LDS_END}")
    a('.amdgcn_target "amdgcn-amd-amdhsa--gfx950"')
    a(".text")
    a(f".globl {NAME}")
    a(".p2align 8")
    a(f".type {NAME},@function")
    a(f"{NAME}:")
    uid = [0]
    def lab(p):
        uid[0] += 1; return f"L_{p}_{uid[0]}"
    def srd(d, p, n):
        a(f"  s_mov_b32 s{d}, s{p}"); a(f"  s_mov_b32 s{d+1}, s{p+1}")
        a(f"  s_mov_b32 s{d+2}, {n}"); a(f"  s_mov_b32 s{d+3}, 0x20000")
    PX, PK, PV, PWQ, PWO, PWG, PWU, PWD, POUT, PWS = 36, 38, 40, 42, 44, 48, 50, 52, 54, 58
    nstamp = [0]
    def stamp(idx):
        if stamps:
            a("  s_memrealtime s[78:79]"); a("  s_waitcnt lgkmcnt(0)"); a(f"  s_mov_b32 s{80+idx}, s78")
    def stamp_flush():
        if stamps:
            srd(24, PWS, 0x1000000)
            a("  s_mov_b64 exec, -1")
            a(f"  s_mul_i32 s76, s2, {NWV}"); a("  s_add_u32 s76, s76, s3"); a("  s_lshl_b32 s76, s76, 6"); a(f"  s_add_u32 s76, s76, {STAMP}")
            a("  s_getreg_b32 s95, hwreg(20)")
            for g in range(4):
                for k in range(4): a(f"  v_mov_b32 v{16+4*g+k}, s{80+4*g+k}")
            a("  v_mov_b32 v15, 0")
            a("  s_mov_b64 exec, 1")
            for g in range(4): a(f"  buffer_store_dwordx4 v[{16+4*g}:{19+4*g}], v15, s[24:27], s76 offen offset:{16*g}")
            a("  s_waitcnt vmcnt(0)")

    if stamps:
        a("  s_memrealtime s[80:81]")
    a("  s_cmp_ge_u32 s2, 256")
    a("  s_cbranch_scc1 L_end")
    a("  s_load_dwordx16 s[36:51], s[0:1], 0")
    a("  s_load_dwordx8 s[52:59], s[0:1], 64")
    if stamps:
        for k in range(82, 96): a(f"  s_mov_b32 s{k}, 0")
    a("  v_lshrrev_b32 v3, 6, v0")
    a("  v_and_b32 v1, 63, v0                 ; lane")
    a("  v_readfirstlane_b32 s3, v3           ; wave")
    a("  s_and_b32 s4, s2, 7                  ; x")
    a("  s_lshr_b32 s5, s2, 3                 ; j")
    a("  v_lshrrev_b32 v9, 3, v1")
    a("  v_and_b32 v10, 7, v1")
    VM = 4
    a("  v_and_b32 v3, 1, v10")
    a("  v_lshlrev_b32 v3, 4, v3")
    a("  v_mov_b32 v8, 0xffff")
    a("  v_lshlrev_b32 v8, v3, v8")
    a("  v_lshrrev_b32 v3, 1, v10")
    for k in range(4):
        a(f"  v_cmp_eq_u32 vcc, {k}, v3")
        a(f"  v_cndmask_b32 v{VM+k}, 0, v8, vcc")
    a("  v_lshrrev_b32 v3, 5, v1")
    a("  v_mul_u32_u24 v11, 768, v3")
    a("  v_lshl_add_u32 v11, v10, 5, v11")
    a("  v_and_b32 v3, 16, v1")
    a("  v_add_u32 v11, v11, v3")
    a("  v_lshlrev_b32 v12, 4, v1             ; lane*16")
    a("  s_mov_b32 s34, 0x00ff00ff")
    a("  s_mov_b32 s35, 0xff00ff00")
    a("  s_cmp_eq_u32 s3, 0")
    a("  s_cbranch_scc0 L_stream")

    def lds_wait(vaddr, off, val, vt, extra=None, sleep=1):
        L = lab("w"); D = lab("d")
        a("  s_mov_b32 s33, 0x100000")
        a(f"{L}:")
        a(f"  ds_read_b32 v{vt}, v{vaddr} offset:{off}")
        if extra: extra()
        a("  s_waitcnt lgkmcnt(0)")
        a(f"  v_readfirstlane_b32 s32, v{vt}")
        a(f"  s_cmp_ge_u32 s32, {val}")
        a(f"  s_cbranch_scc1 {D}")
        a(f"  s_sleep {sleep}")
        a("  s_sub_u32 s33, s33, 1")
        a(f"  s_cbranch_scc0 {L}")
        a(f"{D}:")
    def dppadd(op, d, ctrl):
        a(f"  {op}_dpp v{d}, v{d}, v{d} {ctrl} row_mask:0xf bank_mask:0xf")
    def swapred(op, regs, tmp, which):
        for i, d in enumerate(regs): a(f"  v_mov_b32 v{tmp+i}, v{d}")
        for i, d in enumerate(regs): a(f"  v_permlane{which}_swap_b32 v{d}, v{tmp+i}")
        if op:
            for i, d in enumerate(regs): a(f"  {op} v{d}, v{d}, v{tmp+i}")
    def allreduce(op, regs, tmp, upto=64):
        for ctrl in ("quad_perm:[1,0,3,2]", "quad_perm:[2,3,0,1]", "row_half_mirror", "row_mirror"):
            for d in regs: dppadd(op, d, ctrl)
        swapred(op, regs, tmp, 16)
        if upto == 64: swapred(op, regs, tmp, 32)
    def parreduce(regs, tmp):
        for ctrl in ("quad_perm:[2,3,0,1]", "row_ror:4", "row_ror:8"):
            for d in regs: dppadd("v_add_f32", d, ctrl)
        swapred("v_add_f32", regs, tmp, 16)

    TAG = 6
    WQ = 16
    XF = 136
    T = 146
    a("  v_lshlrev_b32 v13, 2, v1             ; lane*4")
    a("  v_mul_u32_u24 v14, 12288, v9")
    a("  v_lshl_add_u32 v14, v10, 4, v14")
    a("  s_and_b32 s28, s5, 7")
    a("  s_mul_i32 s29, s28, 80")
    a("  s_mul_i32 s28, s29, 12288")
    a("  s_and_b32 s30, s5, 24")
    a("  s_add_u32 s30, s30, s4")
    a("  s_mul_i32 s30, s30, 384")
    a("  s_add_u32 s28, s28, s30")
    a("  s_waitcnt lgkmcnt(0)")
    a(f"  s_load_dword s{TAG}, s[{PWS}:{PWS+1}], 0")
    srd(8, PX, 1280); srd(12, PWQ, 7864320); srd(16, PWS, WS_END)
    for k in range(5): a(f"  buffer_load_dword v{T+k}, v13, s[8:11], 0 offen offset:{256*k} {xp}")
    n = 0
    for i in range(10):
        for t in range(3):
            if n == bar_at: a("  s_barrier")
            r = WQ + 12*i + 4*t
            a(f"  buffer_load_dwordx4 v[{r}:{r+3}], v14, s[12:15], s28 offen offset:{128*t} {pol}")
            n += 1
        if i < 9: a("  s_add_u32 s28, s28, 98304")
    if bar_at >= 30: a("  s_barrier")
    stamp(1)
    a(f"  s_mov_b32 s7, {f32(1/640)}")
    a("  s_waitcnt vmcnt(30)")
    for k in range(5):
        a(f"  v_lshlrev_b32 v{XF+2*k}, 16, v{T+k}")
        a(f"  v_and_b32 v{XF+2*k+1}, 0xffff0000, v{T+k}")
    S = T+5
    a(f"  v_add_f32 v{S}, v{XF}, v{XF+1}")
    for k in range(2, 10): a(f"  v_add_f32 v{S}, v{S}, v{XF+k}")
    allreduce("v_add_f32", [S], T+6)
    a(f"  v_mul_f32 v{S}, s7, v{S}             ; mean")
    Q = T+7
    a(f"  v_sub_f32 v{T}, v{XF}, v{S}")
    a(f"  v_mul_f32 v{Q}, v{T}, v{T}")
    for k in range(1, 10):
        a(f"  v_sub_f32 v{T+(k&1)}, v{XF+k}, v{S}")
        a(f"  v_fmac_f32 v{Q}, v{T+(k&1)}, v{T+(k&1)}")
    allreduce("v_add_f32", [Q], T+6)
    a(f"  v_mul_f32 v{Q}, s7, v{Q}             ; var")
    a(f"  v_cvt_pk_bf16_f32 v{T}, v{S}, v{Q}")
    a(f"  v_lshlrev_b32 v{S}, 16, v{T}         ; bf16(mean)")
    a(f"  v_and_b32 v{Q}, 0xffff0000, v{T}     ; bf16(var)")
    a(f"  v_add_f32 v{Q}, {f32(1e-5)}, v{Q}")
    a(f"  v_cvt_pk_bf16_f32 v{Q}, v{Q}, v{Q}")
    a(f"  v_lshlrev_b32 v{Q}, 16, v{Q}")
    a(f"  v_sqrt_f32 v{Q}, v{Q}")
    a(f"  v_cvt_pk_bf16_f32 v{Q}, v{Q}, v{Q}")
    a(f"  v_lshlrev_b32 v{Q}, 16, v{Q}")
    a(f"  v_rcp_f32 v{Q}, v{Q}")
    a(f"  v_lshlrev_b32 v15, 3, v1")
    for k in range(5):
        x0, x1 = XF+2*k, XF+2*k+1
        a(f"  v_sub_f32 v{x0}, v{x0}, v{S}")
        a(f"  v_sub_f32 v{x1}, v{x1}, v{S}")
        a(f"  v_cvt_pk_bf16_f32 v{x1}, v{x0}, v{x1}")
        a(f"  v_lshlrev_b32 v{x0}, 16, v{x1}")
        a(f"  v_and_b32 v{x1}, 0xffff0000, v{x1}")
        a(f"  v_mul_f32 v{x0}, v{x0}, v{Q}")
        a(f"  v_mul_f32 v{x1}, v{x1}, v{Q}")
        a(f"  v_cvt_pk_bf16_f32 v{x0}, v{x0}, v{x0}")
        a(f"  v_cvt_pk_bf16_f32 v{x1}, v{x1}, v{x1}")
        a(f"  ds_write_b64 v15, v[{x0}:{x1}] offset:{XN+512*k}")
    a(f"  v_add_u32 v15, s29, v9")
    a(f"  v_lshlrev_b32 v15, 2, v15")
    a(f"  v_add_u32 v15, {XN}, v15")
    a("  s_waitcnt lgkmcnt(0)")
    a(f"  s_add_u32 s{TAG}, s{TAG}, 0x9e3779b0")
    a(f"  s_and_b32 s{TAG}, s{TAG}, 0xfffffff0")
    a("  s_getreg_b32 s20, hwreg(20, 0, 4)")
    a(f"  s_or_b32 s20, s20, s{TAG}")
    for k in range(5): a(f"  ds_read2_b32 v[{XF+2*k}:{XF+2*k+1}], v15 offset0:{16*k} offset1:{16*k+8}")
    AC = T+2
    AO = T+14
    a("  s_waitcnt lgkmcnt(0)")
    stamp(2)
    for i in range(10):
        ao = AO + 4*(i & 1)
        for k in range(4): a(f"  v_and_b32 v{ao+k}, v{XF+i}, v{VM+k}")
        a(f"  s_waitcnt vmcnt({27-3*i})")
        for t in range(3):
            r = WQ + 12*i + 4*t
            c = f"v[{AC+4*t}:{AC+4*t+3}]"
            a(f"  v_mfma_f32_16x16x32_bf16 {c}, v[{ao}:{ao+3}], v[{r}:{r+3}], {c if i else 0}")
    a("  v_mul_u32_u24 v14, 12, v1            ; lane*12")
    a("  s_lshl_b32 s28, s4, 5")
    a("  s_add_u32 s28, s28, s5")
    a("  s_lshl_b32 s31, s28, 10")
    a(f"  s_add_u32 s30, s31, {E1}")
    a("  s_mov_b64 exec, s[34:35]")
    for t in range(3): a(f"  ds_write_b128 v11, v[{AC+4*t}:{AC+4*t+3}] offset:{QS+256*t}")
    a("  s_mov_b64 exec, -1")
    G = 16
    for k in range(3): a(f"  ds_read_b32 v{G+k}, v14 offset:{QS+4*k}")
    for k in range(3): a(f"  ds_read_b32 v{G+4+k}, v14 offset:{QS+768+4*k}")
    a(f"  v_mov_b32 v{G+3}, s20")
    a("  s_waitcnt lgkmcnt(0)")
    for k in range(3): a(f"  v_add_f32 v{G+k}, v{G+k}, v{G+4+k}")
    a(f"  buffer_store_dwordx4 v[{G}:{G+3}], v12, s[16:19], s30 offen {h1}")
    stamp(3)
    def touch():
        if tlbj is not None:
            a(f"  s_cmp_eq_u32 s5, {tlbj}")
            a("  s_cbranch_scc0 L_notouch")
        srd(24, PK, KVB)
        a("  v_and_b32 v2, 3, v9")
        a(f"  s_mov_b32 s29, {8*HEADB}")
        a("  v_mul_lo_u32 v2, s29, v2")
        a("  v_min_u32 v3, 5, v10")
        a("  v_lshl_add_u32 v2, v3, 21, v2")
        a(f"  s_mul_i32 s29, s4, {HEADB}")
        a("  s_lshl_b32 s30, s5, 7")
        a("  s_add_u32 s29, s29, s30")
        a("  s_mov_b32 exec_lo, 0x3f3f3f3f")
        a("  s_mov_b32 exec_hi, 0")
        a("  buffer_load_dword v24, v2, s[24:27], s29 offen nt")
        a(f"  s_mov_b32 s24, s{PV}"); a(f"  s_mov_b32 s25, s{PV+1}")
        a("  buffer_load_dword v25, v2, s[24:27], s29 offen nt")
        a("  s_mov_b64 exec, -1")
        a("L_notouch:")
    if tlb == 1: touch()

    def lstore(*txts):
        if not loc:
            for txt in txts: a(f"  {txt} {hl}")
            return
        X = lab("sx"); Y = lab("sy")
        a("  s_cmp_eq_u32 s0, 0")
        a(f"  s_cbranch_scc1 {X}")
        for txt in txts: a(f"  {txt} sc1")
        a(f"  s_branch {Y}")
        a(f"{X}:")
        for txt in txts: a(f"  {txt}")
        a(f"{Y}:")
    def progress_delay(n):
        a(f"  ds_read_b32 v3, v13 offset:{FL+F_G}")
        a("  s_waitcnt lgkmcnt(0)")
        a("  v_readfirstlane_b32 s77, v3")
        a(f"  s_add_u32 s77, s77, {n}")
        a("  s_min_u32 s77, s77, 120")
        lds_wait(13, FL+F_G, "s77", 3, sleep=8)
    def gather(nl, voff, soffs, dst, sleep=None, tail=False, lp=None, first=None, xid=False, tagreg=None, bsleep=None):
        L = lab("g"); D = lab("gd")
        a("  s_mov_b32 s33, 0x10000")
        if lp is None: lp = hs
        if first is not None:
            C = lab("gc")
            for i in range(nl):
                s, imm = soffs[i]
                a(f"  buffer_load_dwordx4 v[{dst+4*i}:{dst+4*i+3}], v{voff}, s[16:19], {s} offen offset:{imm} {first}")
            a(f"  s_branch {C}")
        a(f"{L}:")
        for i in range(nl):
            s, imm = soffs[i]
            a(f"  buffer_load_dwordx4 v[{dst+4*i}:{dst+4*i+3}], v{voff}, s[16:19], {s} offen offset:{imm} {lp}")
        if first is not None: a(f"{C}:")
        if nl == 1:
            a("  s_waitcnt vmcnt(0)")
            a(f"  v_cmp_ne_u32 vcc, {tagreg or 's%d' % TAG}, v{dst+3}")
        else:
            for i in range(nl):
                a(f"  s_waitcnt vmcnt({nl-1-i})")
                tg = "s20" if xid else (tagreg or f"s{TAG}")
                if i == 0: a(f"  v_xor_b32 v3, {tg}, v{dst+3}")
                else:
                    a(f"  v_xor_b32 v2, {tg}, v{dst+4*i+3}")
                    a(f"  v_or_b32 v3, v3, v2")
            a("  v_cmp_lt_u32 vcc, 15, v3" if xid else "  v_cmp_ne_u32 vcc, 0, v3")
        a("  s_and_b64 exec, exec, vcc")
        a(f"  s_cbranch_scc0 {D}")
        if tail:
            S = lab("gs")
            if sleepg: a(f"  s_sleep {sleepg}")
            a("  s_cmp_eq_u32 s30, 4")
            a(f"  s_cbranch_scc1 {S}")
            a(f"  s_sleep {bsleep or sleepb}")
            a(f"{S}:")
        else:
            a(f"  s_sleep {sleep}")
        a("  s_sub_u32 s33, s33, 1")
        a(f"  s_cbranch_scc0 {L}")
        a(f"{D}:")
        a("  s_mov_b64 exec, -1")

    G = 32
    a("  s_lshl_b32 s28, s4, 15")
    a(f"  s_add_u32 s28, s28, {E1}")
    a("  v_mul_u32_u24 v15, 6, v1")
    a("  v_mov_b32 v13, 0")
    a("  s_mov_b32 s30, 0")
    a("  s_mov_b32 s0, 0")
    if q0pre: a(f"  s_sleep {q0pre}")
    a("L_hq:")
    a("  s_add_u32 s29, s28, 4096")
    gather(8, 12, [("s28", 1024*i) for i in range(4)] + [("s29", 1024*i) for i in range(4)], G, sleep=sleepq, lp=gq, xid=True)
    a("  v_readfirstlane_b32 s29, v3")
    a("  s_or_b32 s0, s0, s29")
    for i in range(1, 8):
        for k in range(3): a(f"  v_add_f32 v{G+k}, v{G+k}, v{G+4*i+k}")
    a(f"  v_cvt_pk_bf16_f32 v{G}, v{G}, v{G+1}")
    a(f"  v_cvt_pk_bf16_f32 v{G+2}, v{G+2}, v{G+2}")
    a("  s_add_u32 s30, s30, 1")
    a("  v_mov_b32 v3, s30")
    a(f"  ds_write_b16 v15, v{G} offset:{QB}")
    a(f"  ds_write_b16_d16_hi v15, v{G} offset:{QB+2}")
    a(f"  ds_write_b16 v15, v{G+2} offset:{QB+4}")
    a(f"  ds_write_b32 v13, v3 offset:{FL+F_Q}")
    if stamps:
        a("  s_cmp_eq_u32 s30, 1"); a("  s_cbranch_scc0 L_nst4"); stamp(4); a("L_nst4:")
    if qdelay:
        a("  s_cmp_eq_u32 s30, 1"); a("  s_cbranch_scc0 L_hq_nd")
        if tlb == 2:
            touch(); a("  s_mov_b32 s30, 1")
        lds_wait(13, FL+F_G, qdelay, 3, sleep=8)
        a("L_hq_nd:")
    a("  v_add_u32 v15, 384, v15")
    a("  s_add_u32 s28, s28, 8192")
    a("  s_cmp_lt_u32 s30, 4")
    a("  s_waitcnt lgkmcnt(0)")
    a("  s_cbranch_scc1 L_hq")
    stamp(5)

    if 'noH' in dbg:
        a("  v_mov_b32 v3, 4")
        a(f"  ds_write_b32 v13, v3 offset:{FL+F_P}")
        a("  s_waitcnt lgkmcnt(0)")
        stamp_flush()
        a("  s_endpgm")
    SC = 16
    a("  v_lshlrev_b32 v15, 9, v9")
    a("  v_lshl_add_u32 v15, v10, 4, v15")
    a(f"  v_add_u32 v15, {SB}, v15")
    a("  v_and_b32 v2, 31, v1")
    a("  v_lshlrev_b32 v48, 4, v2             ; (lane&31)*16")
    a("  s_lshl_b32 s28, s4, 9")
    a(f"  s_add_u32 s28, s28, {E3}            ; E3 + x*512")
    a("  s_lshl_b32 s29, s5, 4")
    a("  v_mov_b32 v49, s29                   ; j*16")
    a(f"  s_mov_b32 s7, {f32(192**-0.5)}")
    a(f"  s_mov_b32 s21, {f32(1.4426950408889634)}")
    a("  s_mov_b32 s30, 0")
    a("  v_mov_b32 v50, 0                     ; 4*round")
    a("L_hk:")
    lds_wait(50, FL+F_K, 4, 3, sleep=8)
    for i in range(4): a(f"  ds_read_b128 v[{SC+4*i}:{SC+4*i+3}], v15 offset:{4096*i}")
    a("  s_waitcnt lgkmcnt(0)")
    for k in range(8):
        x0, x1 = SC+2*k, SC+2*k+1
        a(f"  v_cvt_pk_bf16_f32 v{x1}, v{x0}, v{x1}")
        a(f"  v_lshlrev_b32 v{x0}, 16, v{x1}")
        a(f"  v_and_b32 v{x1}, 0xffff0000, v{x1}")
        a(f"  v_mul_f32 v{x0}, s7, v{x0}")
        a(f"  v_mul_f32 v{x1}, s7, v{x1}")
        a(f"  v_cvt_pk_bf16_f32 v{x1}, v{x0}, v{x1}")
        a(f"  v_lshlrev_b32 v{x0}, 16, v{x1}")
        a(f"  v_and_b32 v{x1}, 0xffff0000, v{x1}")
    M = 52; Ls = 53
    a(f"  v_max_f32 v{M}, v{SC}, v{SC+1}")
    for k in range(1, 8): a(f"  v_max3_f32 v{M}, v{M}, v{SC+2*k}, v{SC+2*k+1}")
    allreduce("v_max_f32", [M], 56)
    for k in range(16):
        a(f"  v_sub_f32 v{32+k}, v{SC+k}, v{M}")
        a(f"  v_mul_f32 v{32+k}, s21, v{32+k}")
        a(f"  v_exp_f32 v{32+k}, v{32+k}")
    a(f"  v_add_f32 v{Ls}, v32, v33")
    for k in range(2, 16): a(f"  v_add_f32 v{Ls}, v{Ls}, v{32+k}")
    allreduce("v_add_f32", [Ls], 56)
    a(f"  v_mov_b32 v54, 0")
    a(f"  v_mov_b32 v55, s{TAG}")
    a("  s_mov_b64 exec, 1")
    lstore("buffer_store_dwordx4 v[52:55], v49, s[16:19], s28 offen")
    a("  s_mov_b64 exec, -1")
    if delay: progress_delay(delay)
    gather(1, 48, [("s28", 0)], 60, sleep=sleepb, lp=g3)
    a("  v_mov_b32 v64, v60")
    allreduce("v_max_f32", [64], 56, upto=32)
    a("  v_sub_f32 v60, v60, v64")
    a("  v_mul_f32 v60, s21, v60")
    a("  v_exp_f32 v60, v60")
    a("  v_mul_f32 v61, v61, v60")
    allreduce("v_add_f32", [61], 56, upto=32)
    a("  v_rcp_f32 v62, v61")
    a("  v_fma_f32 v63, -v61, v62, 1.0")
    a("  v_fma_f32 v62, v63, v62, v62            ; refined 1/L")
    for k in range(16):
        a(f"  v_sub_f32 v{32+k}, v{SC+k}, v64")
        a(f"  v_mul_f32 v{32+k}, s21, v{32+k}")
        a(f"  v_exp_f32 v{32+k}, v{32+k}")
    for k in range(16):
        a(f"  v_mul_f32 v{32+k}, v{32+k}, v62")
        a(f"  v_cvt_pk_bf16_f32 v{32+k}, v{32+k}, v{32+k}")
    a("  s_add_u32 s30, s30, 1")
    a("  v_mov_b32 v3, s30")
    for i in range(4): a(f"  ds_write_b128 v15, v[{32+4*i}:{35+4*i}] offset:{4096*i}")
    a(f"  ds_write_b32 v13, v3 offset:{FL+F_P}")
    a("  s_waitcnt lgkmcnt(0)")
    a("  v_add_u32 v15, 128, v15")
    a("  v_add_u32 v50, 4, v50")
    a("  s_add_u32 s28, s28, 4096")
    a("  s_cmp_lt_u32 s30, 4")
    a("  s_cbranch_scc1 L_hk")
    stamp(6)

    if 'noC' in dbg:
        stamp_flush()
        a("  s_endpgm")
    a("  s_and_b32 s28, s5, 15")
    a("  s_mul_i32 s28, s28, 40")
    a("  v_add_u32 v15, s28, v9")
    a("  v_lshlrev_b32 v15, 2, v15")
    a(f"  v_add_u32 v15, {XN}, v15")
    for k in range(5): a(f"  ds_read_b32 v{XF+k}, v15 offset:{32*k}")
    a(f"  v_add_u32 v15, {GB}, v12")
    for q in range(15): a(f"  ds_read_b128 v[{16+4*q}:{19+4*q}], v15 offset:{1024*q}")
    a("  s_waitcnt lgkmcnt(0)")
    for i in range(5):
        ao = AO + 4*(i & 1)
        for k in range(4): a(f"  v_and_b32 v{ao+k}, v{XF+i}, v{VM+k}")
        for t in range(3):
            r = 16 + 12*i + 4*t
            cb = 80 + 12*(i & 3) + 4*t
            c = f"v[{cb}:{cb+3}]"
            a(f"  v_mfma_f32_16x16x32_bf16 {c}, v[{ao}:{ao+3}], v[{r}:{r+3}], {c if i == 4 else 0}")
    a("  s_mov_b64 exec, s[34:35]")
    for i in (1, 2, 3, 0):
        for t in range(3):
            cb = 80 + 12*i + 4*t
            a(f"  ds_write_b128 v11, v[{cb}:{cb+3}] offset:{OB+1536*i+256*t}")
    a("  s_mov_b64 exec, -1")

    Y = 136
    WR = 16
    WP = 48
    O = 80
    a(f"  v_add_u32 v14, {OB}, v12")
    a("  v_lshlrev_b32 v15, 2, v1")
    a(f"  v_add_u32 v15, {WB}, v15")
    a("  v_lshlrev_b32 v145, 5, v1            ; lane*32")
    a("  v_lshrrev_b32 v2, 4, v1")
    a("  v_and_b32 v3, 15, v1")
    a(f"  v_mul_u32_u24 v146, {RS}, v2")
    a("  v_lshl_add_u32 v146, v3, 4, v146")
    a("  v_lshrrev_b32 v2, 2, v1")
    a("  v_and_b32 v3, 3, v1")
    a("  v_lshlrev_b32 v147, 10, v2")
    a("  v_lshl_add_u32 v147, v3, 4, v147")
    a("  s_lshl_b32 s22, s2, 4")
    a("  v_lshl_add_u32 v148, v3, 2, s22")
    a(f"  buffer_load_dword v149, v148, s[8:11], 0 offen {xp}")
    srd(12, POUT, 1280)
    a("  s_mul_hi_u32 s24, s5, 0x33333334     ; jr")
    a("  s_mul_i32 s25, s24, 5")
    a("  s_sub_u32 s25, s5, s25               ; jc")
    a("  s_min_u32 s24, s24, 5")
    a("  s_lshl_b32 s28, s4, 5")
    a("  s_add_u32 s31, s28, s5")
    a(f"  s_mul_i32 s31, s31, {RS}")
    a(f"  s_add_u32 s31, s31, {E4}")
    a(f"  s_mul_i32 s28, s28, {RS}")
    a("  s_lshl_b32 s29, s24, 8")
    a("  s_add_u32 s28, s28, s29")
    a(f"  s_add_u32 s28, s28, {E4}")
    a("  s_mul_i32 s23, s25, 48")
    a("  s_mul_i32 s29, s4, 6")
    a("  s_add_u32 s23, s23, s29")
    a("  s_add_u32 s23, s23, s24")
    a("  s_lshl_b32 s23, s23, 10")
    a(f"  s_add_u32 s23, s23, {E5}")
    a("  s_lshr_b32 s22, s2, 4")
    a("  s_mul_i32 s22, s22, 49152")
    a("  s_and_b32 s29, s2, 15")
    a("  s_lshl_b32 s29, s29, 6")
    a("  s_add_u32 s22, s22, s29")
    a(f"  s_add_u32 s22, s22, {E5}")
    a("  s_mov_b32 s20, 0x05040100")
    a("  s_mov_b32 s21, 0x07060302")
    a("  s_mov_b32 s30, 0")
    a("  v_mov_b32 v150, 0                    ; 4*it")
    for k in range(4): a(f"  v_mov_b32 v{Y+k}, 0")
    a("L_hc:")
    for q in range(16): a(f"  ds_read2st64_b32 v[{WR+2*q}:{WR+2*q+1}], v15 offset0:{2*q} offset1:{2*q+1}")
    a(f"  s_or_b32 s1, s{TAG}, s30")
    for i in range(8): a(f"  s_add_u32 s{60+i}, s28, {4*RS*i}")
    for i in range(3): a(f"  s_add_u32 s{68+i}, s22, {16384*i}")
    for r in (114, 115, 118, 119, 142, 143): a(f"  v_mov_b32 v{r}, s1")
    a("  s_waitcnt lgkmcnt(0)")
    for q in range(16):
        a(f"  v_perm_b32 v{WP+2*q}, v{WR+2*q+1}, v{WR+2*q}, s20")
        a(f"  v_perm_b32 v{WP+2*q+1}, v{WR+2*q+1}, v{WR+2*q}, s21")
    a("  s_cmp_eq_u32 s30, 0")
    a("  s_cbranch_scc1 L_hc_go")
    lds_wait(150, FL+F_V-4, 4, 3, sleep=sleepv)
    a("L_hc_go:")
    if stamps:
        a("  s_cmp_eq_u32 s30, 4"); a("  s_cbranch_scc0 L_nst7"); stamp(7); a("L_nst7:")
    a("  s_mov_b32 exec_hi, 0xffff")
    for p in range(8): a(f"  ds_read_b128 v[{O+4*p}:{O+4*p+3}], v14 offset:{768*p}")
    def pk(d, x, y): a(f"  v_pk_add_f32 v[{d}:{d+1}], v[{x}:{x+1}], v[{y}:{y+1}]")
    for p in range(4):
        a(f"  s_waitcnt lgkmcnt({6-2*p})")
        for h in (0, 2): pk(O+8*p+h, O+8*p+h, O+8*p+4+h)
        if p & 1:
            for h in (0, 2): pk(O+8*(p-1)+h, O+8*(p-1)+h, O+8*p+h)
    pk(112, O, O+16); pk(116, O+2, O+18)
    if 'noS4' in dbg:
        a("  s_mov_b64 exec, -1"); a("  s_cmp_lg_u32 s30, 4"); a("  s_cbranch_scc1 L_hc_next"); a("  s_mov_b32 exec_hi, 0xffff")
    lstore("buffer_store_dwordx4 v[112:115], v145, s[16:19], s31 offen", "buffer_store_dwordx4 v[116:119], v145, s[16:19], s31 offen offset:16")
    a("  s_mov_b64 exec, -1")
    if delay:
        a("  s_cmp_eq_u32 s30, 4"); a("  s_cbranch_scc1 L_hc_nd1")
        progress_delay(delay)
        a("L_hc_nd1:")
    gather(8, 146, [(f"s{60+i}", 0) for i in range(8)], O, tail=True, lp=gl, tagreg="s1")
    if stamps:
        a("  s_cmp_eq_u32 s30, 4"); a("  s_cbranch_scc0 L_nst8"); stamp(8); a("L_nst8:")
    pk(O, O, O+4); pk(O+8, O+8, O+12); pk(O+16, O+16, O+20); pk(O+24, O+24, O+28)
    pk(O, O, O+8); pk(O+16, O+16, O+24)
    a("  s_cmp_eq_u32 s30, 0")
    a("  s_cbranch_scc1 L_hc_ffn")
    pk(O, O, O+16)
    swapred("v_add_f32", [O, O+1], O+4, 16)
    swapred("v_add_f32", [O, O+1], O+4, 32)
    a("L_hc_pack:")
    a(f"  v_cvt_pk_bf16_f32 v{O}, v{O}, v{O+1}")
    for g in range(16):
        for h in range(2):
            a(f"  v_dot2c_f32_bf16_dpp v{Y+2*(g&1)+h}, v{O}, v{WP+2*g+h} row_newbcast:{g} row_mask:0xf bank_mask:0xf")
    if 'noE5f' in dbg: a("  s_cmp_lg_u32 s30, 4")
    else: a("  s_and_b32 s29, s30, 3")
    a("  s_cbranch_scc1 L_hc_next")
    a("  s_cmp_ge_u32 s5, 30")
    a("  s_cbranch_scc1 L_hc_fin")
    pk(140, Y, Y+2)
    a(f"  buffer_store_dwordx4 v[140:143], v12, s[16:19], s23 offen {hs}")
    if stamps:
        a("  s_cmp_eq_u32 s30, 4"); a("  s_cbranch_scc0 L_nst9"); stamp(9); a("L_nst9:")
    a("  s_cmp_ge_u32 s2, 80")
    a("  s_cbranch_scc1 L_hc_fin")
    G = O
    a("  s_cmp_eq_u32 s30, 4"); a("  s_cbranch_scc1 L_hc_nd2")
    progress_delay(delay5)
    a("L_hc_nd2:")
    gather(3, 147, [(f"s{68+i}", 0) for i in range(3)], G, tail=True, lp=g5, tagreg="s1", bsleep=32)
    pk(G, G, G+4); pk(G, G, G+8)
    for ctrl in ("row_ror:4", "row_ror:8"):
        for d in (G, G+1): dppadd("v_add_f32", d, ctrl)
    swapred("v_add_f32", [G, G+1], G+4, 16)
    swapred("v_add_f32", [G, G+1], G+4, 32)
    a(f"  v_cvt_pk_bf16_f32 v{G}, v{G}, v{G+1}")
    a(f"  v_lshlrev_b32 v{G+4}, 16, v{G}")
    a(f"  v_and_b32 v{G+5}, 0xffff0000, v{G}")
    pk(G+4, G+4, 152)
    a(f"  v_cvt_pk_bf16_f32 v{G+2}, v{G+4}, v{G+5}")
    a(f"  v_lshlrev_b32 v{G+4}, 16, v{G+2}")
    a(f"  v_and_b32 v{G+5}, 0xffff0000, v{G+2}")
    pk(G+4, G+4, 154)
    a(f"  v_cvt_pk_bf16_f32 v{G+1}, v{G+4}, v{G+5}")
    a("  s_cmp_eq_u32 s30, 0")
    a("  s_cbranch_scc1 L_hc_keep")
    a("  s_mov_b64 exec, 15")
    a(f"  buffer_store_dword v{G+1}, v148, s[12:15], 0 offen")
    a("  s_cmp_eq_u32 s2, 0")
    a("  s_cbranch_scc0 L_hc_fin")
    a("  s_mov_b64 exec, 1")
    a(f"  v_mov_b32 v107, s{TAG}")
    a(f"  buffer_store_dword v107, v13, s[16:19], 0 offen")
    a("  s_branch L_hc_fin")
    a("L_hc_keep:")
    a(f"  v_lshlrev_b32 v154, 16, v{G}")
    a(f"  v_and_b32 v155, 0xffff0000, v{G}")
    a(f"  v_lshlrev_b32 v152, 16, v149        ; x pair")
    a(f"  v_and_b32 v153, 0xffff0000, v149")
    a("L_hc_fin:")
    a("  s_mov_b64 exec, -1")
    for k in range(4): a(f"  v_mov_b32 v{Y+k}, 0")
    a(f"  s_add_u32 s23, s23, {240*1024}")
    a(f"  s_add_u32 s22, s22, {240*1024}")
    a("L_hc_next:")
    a("  v_add_u32 v14, 6144, v14")
    a("  v_add_u32 v15, 8192, v15")
    a("  v_add_u32 v150, 4, v150")
    if dbuf:
        a("  s_bitcmp1_b32 s30, 0")
        a(f"  s_mov_b32 s29, {256*RS}")
        a(f"  s_cselect_b32 s29, {(-256*RS) & 0xffffffff}, s29")
        a("  s_add_u32 s31, s31, s29")
        a("  s_add_u32 s28, s28, s29")
    else:
        a(f"  s_add_u32 s31, s31, {256*RS}")
        a(f"  s_add_u32 s28, s28, {256*RS}")
    a("  s_add_u32 s30, s30, 1")
    a("  s_cmp_lt_u32 s30, 5")
    a("  s_cbranch_scc1 L_hc")
    stamp(10)
    stamp_flush()
    a("  s_endpgm")
    a("L_hc_ffn:")
    regs = [O, O+1, O+16, O+17]
    swapred("v_add_f32", regs, O+4, 16)
    swapred("v_add_f32", regs, O+4, 32)
    for k in range(2):
        a(f"  v_cvt_pk_bf16_f32 v{O+16+k}, v{O+k}, v{O+16+k}")
        a(f"  v_lshlrev_b32 v{O+k}, 16, v{O+16+k}")
        a(f"  v_and_b32 v{O+16+k}, 0xffff0000, v{O+16+k}")
        a(f"  v_cmp_lt_f32 vcc, 0, v{O+k}")
        a(f"  v_cndmask_b32 v{O+4}, 0, 1.0, vcc")
        a(f"  v_mul_f32 v{O+k}, v{O+k}, v{O+4}")
        a(f"  v_mul_f32 v{O+k}, v{O+k}, v{O+16+k}")
    a("  s_branch L_hc_pack")

    a(".p2align 6")
    a("L_stream:")
    RING = 16; QF = 64; KA = 76; KC = 77
    AOP = 84; PA = 88; PB = 92; ACC = 96
    if ctl:
        a("  s_cmp_eq_u32 s3, 5")
        a("  s_cbranch_scc1 L_ctl")
    a("  s_setprio 1")
    a("  s_sub_u32 s6, s3, 1                  ; w")
    a("  v_mov_b32 v13, 0")
    a("  v_lshlrev_b32 v3, 2, v1")
    a(f"  ds_write_b32 v3, v13 offset:{FL}")
    if ctl:
        a("  s_lshl_b32 s7, s6, 8")
        a(f"  s_add_u32 s7, s7, {PG}")
        a("  v_add_u32 v114, s7, v3")
        a("  v_mov_b32 v115, 0")
        a("  ds_write_b32 v114, v115")
        a("  s_mov_b32 s1, 0")
    if prefetch:
        a("  s_cmp_eq_u32 s6, 0")
        a("  s_cbranch_scc0 L_nopf")
        a("  s_getpc_b64 s[24:25]")
        a("L_pc:")
        a(f"  s_sub_u32 s24, s24, L_pc-{NAME}")
        a("  s_subb_u32 s25, s25, 0")
        a("  v_lshlrev_b32 v3, 7, v1")
        a(f"  v_min_u32 v3, L_end-{NAME}, v3")
        a(f"  global_load_dword v14, v3, s[24:25] {pfp}")
        a("L_nopf:")
    a("  v_mul_u32_u24 v2, 384, v9")
    a("  v_lshl_add_u32 v2, v10, 4, v2")
    a("  v_mul_u32_u24 v15, 3072, v9")
    a("  v_lshl_add_u32 v15, v10, 4, v15")
    a("  s_lshl_b32 s7, s6, 12")
    a("  v_lshl_add_u32 v109, v9, 9, s7")
    a(f"  v_add_u32 v109, {SB}, v109")
    a("  v_lshl_add_u32 v108, v10, 2, v109")
    a("  v_lshlrev_b32 v110, 4, v10")
    a("  s_mul_i32 s7, s6, 1536")
    a(f"  s_add_u32 s7, s7, {OB+6144}")
    a("  v_add_u32 v111, s7, v11")
    a("  v_mov_b32 v112, 0                    ; 4*round")
    a("  v_mov_b32 v113, 1")
    for s in range(8):
        a(f"  s_mov_b32 s{60+2*s}, {hex(0x01010101 << s)}")
        a(f"  s_mov_b32 s{61+2*s}, {hex(0x01010101 << s)}")
    a(f"  s_mul_i32 s29, s4, {HEADB}")
    a("  s_lshl_b32 s7, s5, 2")
    a("  s_add_u32 s7, s7, s6")
    a("  s_mul_i32 s7, s7, 3072")
    a("  s_add_u32 s29, s29, s7")
    a("  s_mov_b32 s28, s29")
    a("  s_waitcnt lgkmcnt(0)")
    srd(8, PK, KVB)
    srd(12, PWO, 7864320); srd(16, PWD, 1966080)
    a("  s_cmp_lt_u32 s5, 16")
    a(f"  s_cselect_b32 s20, s{PWG}, s{PWU}")
    a(f"  s_cselect_b32 s21, s{PWG+1}, s{PWU+1}")
    a("  s_mov_b32 s22, 1966080"); a("  s_mov_b32 s23, 0x20000")
    a("  s_mul_hi_u32 s25, s5, 0x33333334     ; jr")
    a("  s_mul_i32 s7, s25, 5"); a("  s_sub_u32 s7, s5, s7"); a("  s_lshl_b32 s7, s7, 8")
    a("  s_mul_i32 s25, s25, 40960"); a("  s_add_u32 s25, s25, s7")
    a("  s_lshl_b32 s24, s6, 3"); a("  s_add_u32 s24, s24, s4"); a("  s_mul_i32 s24, s24, 245760"); a("  s_add_u32 s24, s24, s25")
    a("  s_mul_i32 s26, s4, 245760"); a("  s_add_u32 s26, s26, s25")
    a("  s_mul_i32 s7, s6, 10240"); a("  s_add_u32 s26, s26, s7")
    a("  v_lshrrev_b32 v3, 4, v1"); a("  v_and_b32 v8, 15, v1"); a("  v_mul_u32_u24 v3, 1280, v3"); a("  v_lshl_add_u32 v8, v8, 4, v3")
    a("  s_and_b32 s27, s5, 15"); a("  s_mul_i32 s27, s27, 122880"); a("  s_mul_i32 s25, s4, 384"); a("  s_add_u32 s27, s27, s25")
    a("  s_barrier")
    stamp(1)
    def pace(n): a(f"  s_waitcnt vmcnt({n-1})")
    a("  s_mul_i32 s25, s6, 24576"); a("  s_add_u32 s25, s25, s27")
    a("  s_mul_i32 s31, s6, 3072"); a(f"  s_add_u32 s31, s31, {GB}")
    for t in range(3):
        a("  s_mov_b32 m0, s31")
        pace(NW)
        a(f"  buffer_load_dwordx4 v15, s[20:23], s25 offen {pol} lds")
        a("  s_add_u32 s25, s25, 128"); a("  s_add_u32 s31, s31, 1024")
    a("  s_cmp_eq_u32 s6, 3")
    a("  s_cbranch_scc1 L_nogu")
    a("  s_lshl_b32 s25, s6, 7"); a("  s_add_u32 s25, s25, s27"); a("  s_add_u32 s25, s25, 98304")
    a("  s_lshl_b32 s31, s6, 10"); a(f"  s_add_u32 s31, s31, {GB+12288}")
    a("  s_mov_b32 m0, s31")
    pace(NW)
    a(f"  buffer_load_dwordx4 v15, s[20:23], s25 offen {pol} lds")
    a("L_nogu:")
    a("  s_cmp_ge_u32 s5, 30")
    a("  s_cbranch_scc1 L_now")
    a("  s_lshl_b32 s31, s6, 11"); a(f"  s_add_u32 s31, s31, {WB}")
    for n in range(2):
        a("  s_mov_b32 m0, s31")
        pace(NW)
        a(f"  buffer_load_dwordx4 v8, s[16:19], s26 offen {pol} lds")
        a("  s_add_u32 s26, s26, 5120"); a("  s_add_u32 s31, s31, 1024")
    a("  s_lshl_b32 s31, s6, 13"); a(f"  s_add_u32 s31, s31, {WB+8192}")
    for n in range(8):
        a("  s_mov_b32 m0, s31")
        pace(NW)
        a(f"  buffer_load_dwordx4 v8, s[12:15], s24 offen {pol} lds")
        if n < 7: a("  s_add_u32 s24, s24, 5120"); a("  s_add_u32 s31, s31, 1024")
    a("L_now:")
    stamp(2)

    SMALL = 393216; BIG = SMALL + 7*HEADB
    def issue(k, cross):
        t = k % 3; r = RING + 4*(k % R)
        a(f"  buffer_load_dwordx4 v[{r}:{r+3}], v2, s[8:11], s28 offen offset:{128*t} {pol}")
        if t == 2:
            if (k // 3) % 8 == 7: cross()
            else: a(f"  s_add_u32 s28, s28, {SMALL}")
    for k in range(LEAD):
        pace(N)
        issue(k, None)
    stamp(3)
    a("  s_mov_b32 s30, 0")
    a("L_k:")
    a("  s_and_b32 s31, s30, 3")
    a("  s_cbranch_scc1 L_k_body")
    a("  s_lshr_b32 s31, s30, 2")
    a("  s_add_u32 s31, s31, 1")
    def rq():
        for t in range(3): a(f"  ds_read_b128 v[{QF+4*t}:{QF+4*t+3}], v110 offset:{QB+128*t}")
    lds_wait(13, FL+F_Q, "s31", 3, extra=rq)
    a("  v_add_u32 v110, 384, v110")
    if stamps:
        a("  s_cmp_eq_u32 s30, 0"); a("  s_cbranch_scc0 L_k_body"); stamp(4)
    a("L_k_body:")
    def crossK():
        a("  s_and_b32 s31, s30, 3")
        a("  s_cmp_eq_u32 s31, 3")
        a(f"  s_cselect_b32 s31, {BIG}, s77")
        a("  s_add_u32 s28, s28, s31")
        a("  s_cmp_eq_u32 s30, 15")
        a("  s_cselect_b32 s28, s29, s28")
        a(f"  s_cselect_b32 s8, s{PV}, s8")
        a(f"  s_cselect_b32 s9, s{PV+1}, s9")
    def prog(k):
        if ctl and k % 3 == 2:
            a("  v_add_u32 v115, 1, v115")
            a("  ds_write_b32 v114, v115")
            if k == 20: a(f"  ds_read_b32 v116, v13 offset:{FL+F_M}")
    def getmode():
        if ctl:
            a("  s_waitcnt lgkmcnt(0)")
            a("  v_readfirstlane_b32 s1, v116")
            if stamps: a("  s_add_u32 s94, s94, s1")
    def variants(tagn, body):
        if not ctl:
            body(N); return
        a("  s_cmp_eq_u32 s1, 0")
        a(f"  s_cbranch_scc0 L_{tagn}_b")
        body(N)
        a(f"  s_branch L_{tagn}_e")
        a(f"L_{tagn}_b:")
        body(NB)
        a(f"L_{tagn}_e:")
        getmode()
    def kbody(n):
        for k in range(24):
            t = k % 3; i = k // 3; r = RING + 4*(k % R)
            pace(n)
            issue(k + LEAD, crossK)
            if t == 0: a(f"  v_mov_b32 v{KA}, 0")
            for e in range(4): a(f"  v_dot2c_f32_bf16 v{KA}, v{r+e}, v{QF+4*t+e}")
            if t == 2:
                dppadd("v_add_f32", KA, "quad_perm:[1,0,3,2]")
                dppadd("v_add_f32", KA, "quad_perm:[2,3,0,1]")
                dppadd("v_add_f32", KA, "row_half_mirror")
                a(f"  v_cndmask_b32 v{KC}, v{KC}, v{KA}, s[{60+2*i}:{61+2*i}]")
            prog(k)
    a(f"  s_mov_b32 s77, {SMALL}")
    variants("kv", kbody)
    a(f"  ds_write_b32 v108, v{KC}")
    a("  s_mov_b64 exec, 1")
    a(f"  ds_add_u32 v13, v113 offset:{FL+F_G}")
    a("  s_add_u32 s30, s30, 1")
    a("  s_and_b32 s31, s30, 3")
    a("  s_cbranch_scc1 L_k_next")
    a(f"  ds_add_u32 v112, v113 offset:{FL+F_K}")
    a("  v_add_u32 v112, 4, v112")
    a("L_k_next:")
    a("  s_mov_b64 exec, -1")
    a("  v_add_u32 v108, 32, v108")
    a("  s_cmp_lt_u32 s30, 16")
    a("  s_cbranch_scc1 L_k")
    stamp(5)
    a("  s_mov_b32 s30, 0")
    a("  v_mov_b32 v112, 0")
    lds_wait(13, FL+F_P, 1, 3, extra=lambda: a(f"  ds_read_b128 v[{PA}:{PA+3}], v109"))
    def crossV():
        a("  s_and_b32 s31, s30, 3")
        a("  s_cmp_eq_u32 s31, 3")
        a(f"  s_cselect_b32 s31, {BIG}, s77")
        a("  s_add_u32 s28, s28, s31")
    def vstep(k):
        t = k % 3; i = k // 3; r = RING + 4*(k % R)
        if t == 0:
            if i in (0, 4): a("  s_waitcnt lgkmcnt(0)")
            p = (PA if i < 4 else PB) + (i & 3)
            for e in range(4): a(f"  v_and_b32 v{AOP+e}, v{p}, v{VM+e}")
            if i == 0: a(f"  ds_read_b128 v[{PB}:{PB+3}], v109 offset:16")
            if i == 4: a(f"  ds_read_b128 v[{PA}:{PA+3}], v109 offset:32")
        c = f"v[{ACC+4*t}:{ACC+4*t+3}]"
        a(f"  v_mfma_f32_16x16x32_bf16 {c}, v[{AOP}:{AOP+3}], v[{r}:{r+3}], {c}")
    def vflush():
        a("  s_mov_b64 exec, s[34:35]")
        for t in range(3): a(f"  ds_write_b128 v111, v[{ACC+4*t}:{ACC+4*t+3}] offset:{256*t}")
        a("  s_mov_b64 exec, 1")
        a(f"  ds_add_u32 v112, v113 offset:{FL+F_V}")
        a("  s_mov_b64 exec, -1")
    a("L_v:")
    a("  s_and_b32 s31, s30, 3")
    a("  s_cbranch_scc1 L_v_body")
    a("  s_lshr_b32 s31, s30, 2")
    a("  s_add_u32 s31, s31, 2")
    a("  s_min_u32 s31, s31, 4")
    lds_wait(13, FL+F_P, "s31", 3)
    for k in range(12): a(f"  v_mov_b32 v{ACC+k}, 0")
    a("L_v_body:")
    def vbody(n):
        for k in range(24):
            pace(n)
            issue(k + LEAD, crossV)
            vstep(k)
            prog(k)
        if ctl: a("  s_nop 3")
    variants("vv", vbody)
    a("  v_add_u32 v109, 32, v109")
    a("  s_mov_b64 exec, 1")
    a(f"  ds_add_u32 v13, v113 offset:{FL+F_G}")
    a("  s_mov_b64 exec, -1")
    a("  s_add_u32 s30, s30, 1")
    a("  s_and_b32 s31, s30, 3")
    a("  s_cbranch_scc1 L_v_next")
    vflush()
    a("  s_waitcnt lgkmcnt(0)")
    a("  v_add_u32 v112, 4, v112")
    a("  v_add_u32 v111, 6144, v111")
    a("L_v_next:")
    a("  s_cmp_lt_u32 s30, 15")
    a("  s_cbranch_scc1 L_v")
    def lastbody(n2, lo, hi):
        for k in range(lo, hi):
            if k + LEAD < 24:
                pace(n2)
                issue(k + LEAD, lambda: None)
            else:
                a(f"  s_waitcnt vmcnt({23-k})")
            vstep(k)
    if ctl and N2B:
        a("  s_cmp_eq_u32 s1, 0")
        a("  s_cbranch_scc0 L_lb_b")
        lastbody(N2, 0, 24-LEAD)
        a("  s_branch L_lb_e")
        a("L_lb_b:")
        lastbody(N2B, 0, 24-LEAD)
        a("L_lb_e:")
        lastbody(N2, 24-LEAD, 24)
    else:
        lastbody(N2, 0, 24)
    stamp(6)
    vflush()
    a("  s_waitcnt lgkmcnt(0)")
    stamp(7)
    stamp_flush()
    if ctl:
        a("  s_endpgm")
        a("L_ctl:")
        a("  s_waitcnt lgkmcnt(0)")
        a(f"  s_load_dword s6, s[{PWS}:{PWS+1}], 0")
        srd(16, PWS, WS_END)
        a("  v_and_b32 v2, 3, v1")
        a("  v_lshlrev_b32 v2, 8, v2")
        a(f"  v_add_u32 v2, {PG}, v2")
        a("  v_and_b32 v14, 31, v1")
        a("  v_lshlrev_b32 v14, 2, v14")
        a("  s_lshl_b32 s28, s4, 7")
        a(f"  s_add_u32 s28, s28, {CT}")
        a("  s_lshl_b32 s29, s5, 2")
        a("  v_mov_b32 v15, s29")
        a("  v_mov_b32 v13, 0")
        if ctl >= 2:
            a("  v_cmp_lt_u32 vcc, 31, v1")
            a("  v_mov_b32 v24, 1024")
            a("  v_cndmask_b32 v14, v14, v24, vcc")
            a("  v_and_b32 v24, 7, v1")
            a("  v_mul_u32_u24 v24, 4352, v24")
            a(f"  s_mov_b32 s27, {CG}")
            a("  s_lshl_b64 s[24:25], 1, s4")
        a("  s_getreg_b32 s20, hwreg(20, 0, 1)")
        a("  s_barrier")
        a("  s_waitcnt lgkmcnt(0)")
        a("  s_add_u32 s6, s6, 0x9e3779b0")
        a("  s_and_b32 s6, s6, 0xffff0000")
        a("  s_mov_b32 s33, 0x8000")
        a("L_ctl_loop:")
        a(f"  s_sleep {csleep}")
        a("  ds_read_b32 v16, v2")
        a("  s_waitcnt lgkmcnt(0)")
        dppadd("v_add_u32", 16, "quad_perm:[1,0,3,2]")
        dppadd("v_add_u32", 16, "quad_perm:[2,3,0,1]")
        a("  v_or_b32 v17, s6, v16")
        a("  v_readfirstlane_b32 s30, v16")
        a("  s_mov_b64 exec, 1")
        a("  buffer_store_dword v17, v15, s[16:19], s28 offen")
        a("  s_mov_b64 exec, -1")
        a(f"  s_cmp_ge_u32 s30, {4*248}")
        a("  s_cbranch_scc1 L_ctl_end")
        a("  buffer_load_dword v18, v14, s[16:19], s28 offen sc1")
        a("  s_waitcnt vmcnt(0)")
        a("  v_xor_b32 v18, s6, v18")
        a("  v_cmp_gt_u32 vcc, 0x10000, v18")
        if ctl >= 2: a("  v_readlane_b32 s7, v18, 32")
        a("  v_sub_u32 v18, v18, v16")
        a("  v_cndmask_b32 v18, 0, v18, vcc")
        allreduce("v_add_u32", [18], 20, upto=32)
        a("  v_readfirstlane_b32 s31, v18")
        if ctl >= 2:
            a("  s_cmp_eq_u32 s5, 0")
            a("  s_cbranch_scc0 L_ctl_np")
            if gstart:
                a(f"  s_cmp_lt_u32 s30, {gstart}")
                a("  s_cbranch_scc1 L_ctl_np")
            if gper > 1:
                a(f"  s_and_b32 s29, s33, {gper-1}")
                a("  s_cbranch_scc1 L_ctl_np")
            a("  s_lshl_b32 s29, s30, 5")
            a("  s_add_u32 s29, s29, s31")
            a("  s_or_b32 s21, s29, s6")
            a("  v_mov_b32 v27, s21")
            a("  v_mov_b32 v26, s21")
            a("  s_mov_b64 exec, s[24:25]")
            a("  buffer_store_dword v27, v24, s[16:19], s27 offen sc1")
            a("  s_xor_b64 exec, exec, 0xff")
            a(f"  buffer_load_dword v26, v24, s[16:19], s27 offen {gcl}")
            a("  s_mov_b64 exec, -1")
            a("  s_waitcnt vmcnt(0)")
            a("  v_xor_b32 v26, s6, v26")
            a("  v_cmp_le_u32 vcc, 0x10000, v26")
            a("  v_subrev_u32 v26, s29, v26")
            a("  s_cmp_eq_u64 vcc, 0")
            a("  s_cbranch_scc0 L_ctl_np")
            for ctrl in ("quad_perm:[1,0,3,2]", "quad_perm:[2,3,0,1]", "row_half_mirror"): dppadd("v_add_u32", 26, ctrl)
            a("  v_readfirstlane_b32 s23, v26")
            a("  s_ashr_i32 s23, s23, 3")
            a("  s_mov_b64 exec, 1")
            a(f"  s_add_i32 s23, s23, {0x8000 + 32*gthr}")
            a("  s_max_i32 s23, s23, 0")
            a("  s_min_i32 s23, s23, 0xffff")
            a("  s_or_b32 s23, s23, s6")
            a("  v_mov_b32 v27, s23")
            a("  buffer_store_dword v27, v13, s[16:19], s28 offen offset:1024")
            a("  s_mov_b64 exec, -1")
            a("L_ctl_np:")
            a("  s_cmp_lt_u32 s7, 0x10000")
            if par: a("  s_cselect_b32 s20, 1, s20")
            a("  s_cselect_b32 s7, s7, 0x8000")
            a("  s_sub_i32 s7, s7, 0x8000")
            a("  s_add_i32 s31, s31, s7")
            if stamps: a("  s_mov_b32 s93, s7")
        if par:
            a("  s_cmp_eq_u32 s20, 0")
            a(f"  s_cselect_b32 s29, {32*par}, 0")
            a("  s_add_i32 s31, s31, s29")
        a(f"  s_cmp_gt_i32 s31, {32*thr}")
        a("  s_cselect_b32 s29, 1, 0")
        a("  v_mov_b32 v19, s29")
        a(f"  ds_write_b32 v13, v19 offset:{FL+F_M}")
        a("  s_sub_u32 s33, s33, 1")
        a("  s_cbranch_scc0 L_ctl_loop")
        a("L_ctl_end:")
        if stamps:
            a("  s_sub_u32 s94, 0x8000, s33")
        stamp_flush()
    a("L_end:")
    a("  s_endpgm")
    a('.section .rodata,"a"')
    a(".p2align 6")
    a(f".amdhsa_kernel {NAME}")
    a("  .amdhsa_next_free_vgpr 168")
    a("  .amdhsa_next_free_sgpr 96")
    a("  .amdhsa_accum_offset 168")
    a("  .amdhsa_group_segment_fixed_size 0")
    a("  .amdhsa_kernarg_size 96")
    a("  .amdhsa_user_sgpr_count 2")
    a("  .amdhsa_user_sgpr_kernarg_segment_ptr 1")
    a("  .amdhsa_system_sgpr_workgroup_id_x 1")
    a("  .amdhsa_float_denorm_mode_32 3")
    a(".end_amdhsa_kernel")
    return a.fix()

if __name__ == "__main__":
    import json
    kw = json.loads(sys.argv[2]) if len(sys.argv) > 2 else {}
    open(sys.argv[1], "w").write(gen(**kw))
```
